```python
import torch

def _softmax(x, axis=-1):
    return torch.softmax(x, dim=axis)
def _gelu(x):
    return torch.nn.functional.gelu(x, approximate="tanh")
def _silu(x):
    return torch.nn.functional.silu(x)
def _sigmoid(x):
    return torch.sigmoid(x)
def _layernorm(x, axis=-1, eps=1e-5):
    m = x.mean(dim=axis, keepdim=True)
    v = x.var(dim=axis, keepdim=True, unbiased=False)
    return (x - m) / torch.sqrt(v + eps)
def _scatter_add(tgt, idx, src, axis=0):
    return tgt.clone().index_add_(axis, idx, src)
def _segment_sum(src, seg, n):
    out = torch.zeros((n,) + src.shape[1:], dtype=src.dtype)
    return out.index_add_(0, seg, src)
def _pad(x, pw):
    flat = tuple(v for pair in reversed(pw) for v in pair)
    return torch.nn.functional.pad(x, flat)

kernel_name = 'parallel_sum__ssm_conv_s4__glu_gated_reglu__prompt'

def setup_inputs():

    _w = (lambda a: (lambda t: t.to(torch.bfloat16) if t.is_floating_point() else t)(torch.as_tensor(a)))
    def _A_setup():
        B, L, D, N = 1, 2048, 512, 128
        A_re = -(lambda _x: torch.exp(torch.as_tensor(_x)))((lambda *s: torch.randn(*s, dtype=torch.bfloat16) * 6.4)(D, N))
        A_im = torch.pi * (lambda *s: torch.randn(*s, dtype=torch.bfloat16) * 0.05)(D, N)
        B_re = (lambda *s: torch.randn(*s, dtype=torch.bfloat16) * 0.1)(D, N)
        B_im = (lambda *s: torch.randn(*s, dtype=torch.bfloat16) * 0.1)(D, N)
        C_re = (lambda *s: torch.randn(*s, dtype=torch.bfloat16) * 0.1)(D, N)
        C_im = (lambda *s: torch.randn(*s, dtype=torch.bfloat16) * 0.1)(D, N)
        log_dt = (lambda *s: torch.randn(*s, dtype=torch.bfloat16) * 0.05)(D) * 0.5 - 4.0
        Dskip = (lambda *s: torch.randn(*s, dtype=torch.bfloat16) * 0.05)(D)
        return {
            "u": _w((lambda *s: torch.randn(*s, dtype=torch.bfloat16) * 0.05)(B, L, D)),
            "A_re": _w(A_re),
            "A_im": _w(A_im),
            "B_re": _w(B_re),
            "B_im": _w(B_im),
            "C_re": _w(C_re),
            "C_im": _w(C_im),
            "log_dt": _w(log_dt),
            "Dskip": _w(Dskip),
        }
    _A_in = _A_setup()

    def _B_setup():
        B, S, D, F = 1, 2048, 512, 1792
        return {
            "x": _w((lambda *s: torch.randn(*s, dtype=torch.bfloat16) * 0.05)(B, S, D)),
            "W_gate": _w((lambda *s: torch.randn(*s, dtype=torch.bfloat16) * 0.4)(D, F) * (2.0 / D) ** 0.5),
            "W_up": _w((lambda *s: torch.randn(*s, dtype=torch.bfloat16) * 0.4)(D, F) * (2.0 / D) ** 0.5),
            "W_down": _w((lambda *s: torch.randn(*s, dtype=torch.bfloat16) * 0.4)(F, D) * (1.0 / F) ** 0.5),
        }
    _B_in = _B_setup()

    return {
        "A_u": _A_in["u"],
        "A_A_re": _A_in["A_re"],
        "A_A_im": _A_in["A_im"],
        "A_B_re": _A_in["B_re"],
        "A_B_im": _A_in["B_im"],
        "A_C_re": _A_in["C_re"],
        "A_C_im": _A_in["C_im"],
        "A_log_dt": _A_in["log_dt"],
        "A_Dskip": _A_in["Dskip"],
        "B_x": _B_in["x"],
        "B_W_gate": _B_in["W_gate"],
        "B_W_up": _B_in["W_up"],
        "B_W_down": _B_in["W_down"],
    }

def reference(A_u, A_A_re, A_A_im, A_B_re, A_B_im, A_C_re, A_C_im, A_log_dt, A_Dskip, B_x, B_W_gate, B_W_up, B_W_down):
    def _A_ref(u, A_re, A_im, B_re, B_im, C_re, C_im, log_dt, Dskip):
        Bsz, L, D = u.shape
        dt = torch.exp(log_dt)[:, None]
        A = A_re + 1j * A_im
        Bc = B_re + 1j * B_im
        Cc = C_re + 1j * C_im
        logdA = dt * A
        dB = dt * Bc
        l = (lambda x, dt: x.to(dt))(torch.arange(L), A_re.dtype)
        P = torch.exp(logdA[:, :, None] * l[None, None, :])
        K = torch.einsum("dn,dnl,dn->dl", Cc, P, dB).real
        L2 = 2 * L
        Kp = _pad(K, ((0, 0), (0, L)))
        up = (lambda x, *d: x.permute(*d))(u, 0, 2, 1)
        up = _pad(up, ((0, 0), (0, 0), (0, L)))
        Kf = (lambda x, axes=(-2,-1): torch.fft.rfft2(x.float(), dim=axes))(Kp[:, None, :], axes=(-2, -1))
        Uf = (lambda x, axes=(-2,-1): torch.fft.rfft2(x.float(), dim=axes))(up[:, :, None, :], axes=(-2, -1))
        Yf = Uf * Kf[None, :, :, :]
        y = (lambda x, s, axes=(-2,-1): torch.fft.irfft2(x, s=s, dim=axes).to(torch.bfloat16))(Yf, (1, L2), axes=(-2, -1))[:, :, 0, :L]
        y = (lambda x, *d: x.permute(*d))(y, 0, 2, 1) + u * Dskip[None, None, :]
        return y

    def _B_ref(x, W_gate, W_up, W_down):
        gate = torch.einsum("bsd,df->bsf", x, W_gate)
        up = torch.einsum("bsd,df->bsf", x, W_up)
        gate = gate * (lambda x, dt: x.to(dt))(gate > 0, gate.dtype)
        h = gate * up
        return torch.einsum("bsf,fd->bsd", h, W_down)

    x = A_u
    xn = _layernorm(x, axis=-1)
    return x + _A_ref(xn, A_A_re, A_A_im, A_B_re, A_B_im, A_C_re, A_C_im, A_log_dt, A_Dskip) + _B_ref(xn, B_W_gate, B_W_up, B_W_down)
```

```python
import re

TRANS = ("v_exp_f32", "v_log_f32", "v_rcp_f32", "v_rsq_f32", "v_sqrt_f32", "v_sin_f32", "v_cos_f32")
_REG = re.compile(r"^-?(?:abs\()?\|?([vas])(?:\[(\d+):(\d+)\]|(\d+))\|?\)?$")


def regs(tok):
    tok = tok.strip()
    if tok in ("vcc", "vcc_lo", "vcc_hi"):
        return {("s", "vcc")}
    if tok in ("exec", "exec_lo", "exec_hi"):
        return {("s", "exec")}
    if tok == "m0":
        return {("s", "m0")}
    m = _REG.match(tok)
    if not m:
        return set()
    k = m.group(1)
    if m.group(4) is not None:
        return {(k, int(m.group(4)))}
    return {(k, i) for i in range(int(m.group(2)), int(m.group(3)) + 1)}


class Ins:
    def __init__(self, text):
        self.text = text
        t = text.split(";")[0].strip()
        self.label = t.endswith(":")
        self.op = t.split()[0] if t and not self.label else ""
        rest = t[len(self.op):].strip() if not self.label else ""
        toks = [x.strip() for x in rest.split(",")] if rest else []
        if toks:
            last = toks[-1].split()
            toks[-1] = last[0] if last else ""
            self.mods = " ".join(last[1:])
        else:
            self.mods = ""
        self.toks = toks
        op = self.op
        self.mfma = op.startswith("v_mfma")
        self.valu = op.startswith("v_") and not self.mfma
        self.salu = op.startswith("s_")
        self.ds = op.startswith("ds_")
        self.vmem = op.startswith("buffer_") or op.startswith("global_")
        self.trans = any(op.startswith(x) for x in TRANS)
        self.dpp = any(w in self.mods for w in ("row_", "quad_perm", "wave_")) or op.endswith("_dpp")
        self.passes = 0
        d, u = set(), set()
        R = [regs(x) for x in toks]
        if self.mfma:
            self.passes = 8 if "32x32" in op else 4
            d = R[0]; self.srcab = R[1] | R[2]; self.srcc = R[3]; u = self.srcab | self.srcc
        elif self.valu:
            if op.startswith("v_cmp"):
                d = R[0]; u = set().union(*R[1:])
                if op.startswith("v_cmpx"):
                    d = d | {("s", "exec")}
            elif "permlane" in op and "swap" in op:
                d = R[0] | R[1]; u = R[0] | R[1]
            elif re.match(r"v_(add|sub|subrev)_co_u32|v_mad_u64_u32|v_div_scale", op):
                d = R[0] | R[1]; u = set().union(*R[2:])
            elif re.match(r"v_(addc|subb)_co_u32", op):
                d = R[0] | R[1]; u = set().union(*R[2:])
            elif op == "v_nop":
                pass
            else:
                d = R[0]; u = set().union(*R[1:]) if len(R) > 1 else set()
                if re.match(r"v_(fmac|pk_fmac|dot2c|writelane)", op) or self.dpp or "sdwa" in op or "op_sel:" in self.mods and "cvt" in op:
                    u = u | R[0]
                if op.startswith("v_cndmask") and len(toks) == 3:
                    u = u | {("s", "vcc")}
        elif self.ds:
            if "read" in op or "permute" in op or "swizzle" in op:
                d = R[0]; u = set().union(*R[1:]) if len(R) > 1 else set()
                if "d16" in op:
                    u = u | R[0]
            else:
                u = set().union(*R)
            if "addtid" in op:
                u = u | {("s", "m0")}
        elif self.vmem:
            lds = " lds" in " " + self.mods or "_lds_" in op
            if "load" in op and not lds:
                d = R[0]; u = set().union(*R[1:])
                if "d16" in op:
                    u = u | R[0]
            else:
                u = set().union(*R) if R else set()
                if lds:
                    u = u | {("s", "m0")}
            self.lds = lds
        elif self.salu:
            if re.match(r"s_(cmp|bitcmp|cbranch|branch|waitcnt|nop|barrier|endpgm|sleep|setprio)", op):
                u = set().union(*R) if R else set()
            elif "saveexec" in op:
                d = R[0] | {("s", "exec")}; u = set().union(*R[1:]) | {("s", "exec")}
            else:
                d = R[0] if R else set(); u = set().union(*R[1:]) if len(R) > 1 else set()
        self.d, self.u = d, u
        self.wide_store = (self.vmem and re.search(r"store_dwordx[34]", op) is not None)
        self.sdata = R[0] if self.wide_store and op.startswith("buffer") else (R[1] if self.wide_store else set())
        self.states = (int(toks[0]) + 1) if op == "s_nop" else (0 if self.label or not op or op.startswith(".") else 1)


def need(p, c):
    n = 0
    vec = lambda s: {r for r in s if r[0] in "va"}
    sc = lambda s: {r for r in s if r[0] == "s"}
    if p.valu:
        if c.mfma and vec(p.d) & c.u: n = max(n, 2)
        if c.valu and (c.dpp or "permlane" in c.op) and vec(p.d) & c.u: n = max(n, 2)
        if c.op.startswith(("v_readfirstlane", "v_readlane")) and vec(p.d) & c.u: n = max(n, 1)
        if p.trans and c.valu and not c.trans and p.d & c.u: n = max(n, 1)
        if p.trans and (c.mfma and p.d & c.u): n = max(n, 2)
        if sc(p.d):
            if c.vmem and sc(p.d) & c.u: n = max(n, 5)
            if c.valu and sc(p.d) & c.u: n = max(n, 4 if c.op.startswith(("v_readlane", "v_writelane")) else 2)
            if ("s", "exec") in p.d:
                if c.dpp: n = max(n, 5)
                if c.mfma or "permlane" in c.op or c.op.startswith("v_read"): n = max(n, 4)
        if ("op_sel:" in p.mods and "v_pk_" not in p.op or "sdwa" in p.op) and c.valu and p.d & (c.u | c.d): n = max(n, 1)
    if p.salu and ("s", "m0") in p.d and ("s", "m0") in c.u and (c.vmem or c.ds): n = max(n, 1)
    if p.mfma:
        far = {4: 8, 8: 12}[p.passes]
        if c.mfma:
            if p.d & c.srcab: n = max(n, far)
            if p.d & c.srcc and not (p.d == c.srcc and p.passes == c.passes): n = max(n, {4: 6, 8: 10}[p.passes])
            if p.d & c.d and not (p.d & c.srcc): n = max(n, far)
        elif (c.valu or c.ds or c.vmem) and p.d & (c.u | c.d): n = max(n, far)
        if c.valu and p.srcc & c.d: n = max(n, {4: 3, 8: 7}[p.passes])
    if p.wide_store and p.sdata & c.d: n = max(n, 2)
    return n


class Asm:
    def __init__(self):
        self.lines = []

    def __call__(self, text):
        for ln in text.split("\n"):
            ln = ln.strip()
            if ln and not ln.startswith(";"):
                self.lines.append(ln)

    def finish(self, verbose=False):
        out = []
        pads = 0
        for ln in self.lines:
            c = Ins(ln)
            if c.op and not c.op.startswith("."):
                want, dist = 0, 0
                for p in reversed(out):
                    if dist >= 20: break
                    if p.op in ("s_branch", "s_endpgm"): break
                    want = max(want, need(p, c) - dist)
                    dist += p.states
                while want > 0:
                    k = min(want, 16)
                    out.append(Ins("s_nop %d" % (k - 1))); want -= k; pads += k
            out.append(c)
        labels = {i.text[:-1]: n for n, i in enumerate(out) if i.label}
        for n, i in enumerate(out):
            if i.op.startswith(("s_cbranch", "s_branch")) and i.toks[0] in labels:
                tgt = labels[i.toks[0]]
                head = [x for x in out[tgt:tgt + 40]]
                tail = out[max(0, n - 40):n + 1]
                for a in range(len(head)):
                    c = head[a]
                    if not c.op: continue
                    dist = sum(x.states for x in head[:a])
                    for p in reversed(tail):
                        if dist >= 20: break
                        if need(p, c) > dist:
                            raise SystemExit("wait-state violation across branch to %s: [%s] -> [%s]" % (i.toks[0], p.text, c.text))
                        dist += p.states
                    if c.op in ("s_branch", "s_endpgm"): break
        if verbose:
            print("instructions", sum(1 for i in out if i.op), "pad states", pads)
        return "\n".join(("" if i.label else "    ") + i.text for i in out) + "\n"


def vr(base, n=1, k="v"):
    return "%s%d" % (k, base) if n == 1 else "%s[%d:%d]" % (k, base, base + n - 1)


def ar(base, n=1):
    return vr(base, n, "a")


def sr(base, n=1):
    return vr(base, n, "s")


class Sb:
    LIM = {"vm": 63, "lgkm": 15}
    NAME = {"vm": "vmcnt", "lgkm": "lgkmcnt"}

    def __init__(self, a):
        self.a = a
        self.q = {"vm": [], "lgkm": []}

    def op(self, kind, text, tag=None):
        self.a(text)
        self.q[kind].append(tag)

    def vm(self, text, tag=None): self.op("vm", text, tag)
    def ds(self, text, tag=None): self.op("lgkm", text, tag)

    def need(self, kind, tags):
        tags = set(tags if isinstance(tags, (list, tuple, set)) else [tags])
        q = self.q[kind]
        last = max((i for i, t in enumerate(q) if t in tags), default=-1)
        if last < 0:
            return
        n = min(len(q) - 1 - last, self.LIM[kind])
        self.a("s_waitcnt %s(%d)" % (self.NAME[kind], n))
        self.q[kind] = q[len(q) - n:] if n else []

    def drain(self, *kinds):
        self.a("s_waitcnt " + " ".join("%s(0)" % self.NAME[k] for k in kinds))
        for k in kinds:
            self.q[k] = []
```

```python
from asmlib import *

NAME = "parallel_sum__ssm_conv_s4__glu_gated_reglu__prompt"
WS_STATS, WS_XNB, WS_Y, WS_WDF, WS_H = 0x10000, 0x100000, 0x300000, 0x500000, 0x700000
P_U, P_ARE, P_AIM, P_BRE, P_BIM, P_CRE, P_CIM, P_LDT, P_DSK, P_BX, P_WG, P_WU, P_WD, P_OUT, P_DBG, P_WS = range(8, 40, 2)
SX, SW, SWS, SO = 40, 44, 48, 52
S_WV, S_XCD, S_LOC = 56, 57, 58
LOG2E = 0x3fb8aa3b
INV2PI = 0x3e22f983


def f2u(x):
    import struct
    return struct.unpack("<I", struct.pack("<f", x))[0]


def srd(a, dst, ptr, size):
    a("s_mov_b32 s%d, s%d\ns_mov_b32 s%d, s%d\ns_mov_b32 s%d, 0x%x\ns_mov_b32 s%d, 0x20000" %
      (dst, ptr, dst + 1, ptr + 1, dst + 2, size, dst + 3))


def prologue(a, end_label):
    a("""
    s_cmp_ge_u32 s2, 256
    s_cbranch_scc1 %s
    s_load_dwordx16 s[8:23], s[0:1], 0
    s_load_dwordx16 s[24:39], s[0:1], 64
    v_lshrrev_b32 v2, 6, v0
    v_and_b32 v1, 63, v0
    v_readfirstlane_b32 s%d, v2
    s_and_b32 s%d, s2, 7
    s_lshr_b32 s%d, s2, 3
    s_waitcnt lgkmcnt(0)
    """ % (end_label, S_WV, S_XCD, S_LOC))
    srd(a, SX, P_U, 2048 * 512 * 2)
    srd(a, SWS, P_WS, 0x1000000)
    srd(a, SO, P_OUT, 2048 * 512 * 2)


def unpack(a, dst, src, n):
    for i in range(n):
        a("v_lshlrev_b32 v%d, 16, v%d" % (dst + 2 * i, src + i))
        a("v_and_b32 v%d, 0xffff0000, v%d" % (dst + 2 * i + 1, src + i))


def wave_allsum(a, vals, tmps):
    for sh in (8, 4, 2, 1):
        for v in vals:
            a("v_add_f32_dpp v%d, v%d, v%d row_ror:%d row_mask:0xf bank_mask:0xf" % (v, v, v, sh))
    for op in ("v_permlane16_swap_b32", "v_permlane32_swap_b32"):
        for v, t in zip(vals, tmps):
            a("v_mov_b32 v%d, v%d" % (t, v))
        for v, t in zip(vals, tmps):
            a("%s v%d, v%d" % (op, v, t))
        for v, t in zip(vals, tmps):
            a("v_add_f32 v%d, v%d, v%d" % (v, v, t))


def ln_issue(a, sb, V, sW):
    a("""
    s_and_b32 s60, s%d, 1
    s_lshl_b32 s60, s60, 7
    s_lshr_b32 s61, s%d, 1
    s_lshl_b32 s61, s61, 5
    s_add_u32 s60, s60, s61
    s_add_u32 s%d, s60, s%d
    s_lshl_b32 s60, s%d, 13
    s_lshl_b32 s61, s%d, 11
    s_add_u32 s60, s60, s61
    v_lshlrev_b32 v%d, 4, v1
    """ % (S_XCD, S_XCD, sW, S_LOC, sW, S_WV, V + 8))
    sb.vm("buffer_load_dwordx4 %s, v%d, s[%d:%d], s60 offen" % (vr(V, 4), V + 8, SX, SX + 3), "ln")
    sb.vm("buffer_load_dwordx4 %s, v%d, s[%d:%d], s60 offen offset:1024" % (vr(V + 4, 4), V + 8, SX, SX + 3), "ln")


def ln_compute(a, sb, V, sW, lds, st_flags=""):
    F = (V + 10, V + 18)
    T = V + 26
    S = (V + 34, V + 36)
    sb.need("vm", "ln")
    for i in range(2):
        unpack(a, F[i], V + 4 * i, 4)
    for i in range(2):
        f, t = F[i], T + 4 * i
        a("v_pk_add_f32 %s, %s, %s" % (vr(t, 2), vr(f, 2), vr(f + 2, 2)))
        a("v_pk_add_f32 %s, %s, %s" % (vr(t + 2, 2), vr(f + 4, 2), vr(f + 6, 2)))
    for i in range(2):
        t = T + 4 * i
        a("v_pk_add_f32 %s, %s, %s" % (vr(t, 2), vr(t, 2), vr(t + 2, 2)))
    for i in range(2):
        a("v_add_f32 v%d, v%d, v%d" % (S[i], T + 4 * i, T + 4 * i + 1))
    wave_allsum(a, [S[0], S[1]], [T, T + 1])
    for i in range(2):
        a("v_mul_f32 v%d, 0x%x, v%d" % (S[i], f2u(1.0 / 512), S[i]))
    D = V + 38
    for i in range(2):
        for j in range(4):
            a("v_pk_add_f32 %s, %s, %s op_sel_hi:[1,0] neg_lo:[0,1] neg_hi:[0,1]" % (vr(D + 2 * j, 2), vr(F[i] + 2 * j, 2), vr(S[i], 2)))
        t = T + 4 * i
        a("v_pk_mul_f32 %s, %s, %s" % (vr(t, 2), vr(D, 2), vr(D, 2)))
        a("v_pk_mul_f32 %s, %s, %s" % (vr(t + 2, 2), vr(D + 2, 2), vr(D + 2, 2)))
        a("v_pk_fma_f32 %s, %s, %s, %s" % (vr(t, 2), vr(D + 4, 2), vr(D + 4, 2), vr(t, 2)))
        a("v_pk_fma_f32 %s, %s, %s, %s" % (vr(t + 2, 2), vr(D + 6, 2), vr(D + 6, 2), vr(t + 2, 2)))
        a("v_pk_add_f32 %s, %s, %s" % (vr(t, 2), vr(t, 2), vr(t + 2, 2)))
        a("v_add_f32 v%d, v%d, v%d" % (S[i] + 1, t, t + 1))
    wave_allsum(a, [S[0] + 1, S[1] + 1], [T, T + 1])
    for i in range(2):
        a("v_mul_f32 v%d, 0x%x, v%d" % (S[i] + 1, f2u(1.0 / 512), S[i] + 1))
    for i in range(2):
        a("v_cvt_pk_bf16_f32 v%d, v%d, v%d" % (T + i, S[i], S[i] + 1))
    for i in range(2):
        a("v_lshlrev_b32 v%d, 16, v%d" % (S[i], T + i))
        a("v_and_b32 v%d, 0xffff0000, v%d" % (S[i] + 1, T + i))
    for i in range(2):
        a("v_add_f32 v%d, 0x%x, v%d" % (S[i] + 1, f2u(1e-5), S[i] + 1))
    a("v_cvt_pk_bf16_f32 v%d, v%d, v%d" % (T, S[0] + 1, S[1] + 1))
    a("v_lshlrev_b32 v%d, 16, v%d" % (T + 1, T))
    a("v_and_b32 v%d, 0xffff0000, v%d" % (T + 2, T))
    a("v_sqrt_f32 v%d, v%d" % (T + 1, T + 1))
    a("v_sqrt_f32 v%d, v%d" % (T + 2, T + 2))
    a("v_cvt_pk_bf16_f32 v%d, v%d, v%d" % (T, T + 1, T + 2))
    a("v_lshlrev_b32 v%d, 16, v%d" % (T + 1, T))
    a("v_and_b32 v%d, 0xffff0000, v%d" % (T + 2, T))
    a("v_rcp_f32 v%d, v%d" % (S[0] + 1, T + 1))
    a("v_rcp_f32 v%d, v%d" % (S[1] + 1, T + 2))
    a("""
    s_lshl_b32 s60, s%d, 6
    s_lshl_b32 s61, s%d, 4
    s_add_u32 s60, s60, s61
    s_add_u32 s60, s60, 0x%x
    v_mov_b32 v%d, 0
    s_mov_b64 exec, 1
    """ % (sW, S_WV, WS_STATS, T))
    sb.vm("buffer_store_dwordx4 %s, v%d, s[%d:%d], s60 offen %s" % (vr(S[0], 4), T, SWS, SWS + 3, st_flags), "st")
    a("s_mov_b64 exec, -1")
    a("s_mul_i32 s60, s%d, %d" % (S_WV, -2 * 1088))
    a("s_add_u32 s60, s60, %d" % (lds + 6 * 1088))
    a("v_add_u32 v%d, s60, v%d" % (V + 9, V + 8))
    for i in range(2):
        for j in range(4):
            a("v_pk_add_f32 %s, %s, %s op_sel_hi:[1,0] neg_lo:[0,1] neg_hi:[0,1]" % (vr(D + 2 * j, 2), vr(F[i] + 2 * j, 2), vr(S[i], 2)))
        for j in range(4):
            a("v_cvt_pk_bf16_f32 v%d, v%d, v%d" % (T + j, D + 2 * j, D + 2 * j + 1))
        unpack(a, D, T, 4)
        for j in range(4):
            a("v_pk_mul_f32 %s, %s, %s op_sel:[0,1]" % (vr(D + 2 * j, 2), vr(D + 2 * j, 2), vr(S[i], 2)))
        for j in range(4):
            a("v_cvt_pk_bf16_f32 v%d, v%d, v%d" % (V + 4 * i + j, D + 2 * j, D + 2 * j + 1))
        sb.ds("ds_write_b128 v%d, %s offset:%d" % (V + 9, vr(V + 4 * i, 4), (1 - i) * 1088), "w")
    a("""
    v_bfe_u32 v%d, v1, 2, 2
    v_mul_u32_u24 v%d, 1088, v%d
    v_and_b32 v%d, 3, v1
    v_lshl_add_u32 v%d, v%d, 3, v%d
    v_lshrrev_b32 v%d, 4, v1
    v_lshl_add_u32 v%d, v%d, 5, v%d
    s_lshl_b32 s60, s%d, 8
    s_add_u32 s60, s60, %d
    v_add_u32 v%d, s60, v%d
    s_lshl_b32 s60, s%d, 13
    s_lshl_b32 s61, s%d, 11
    s_add_u32 s60, s60, s61
    s_add_u32 s60, s60, 0x%x
    """ % (T, T, T, T + 1, T, T + 1, T, T + 1, T, T + 1, T, S_WV, lds, T, T, sW, S_WV, WS_XNB))
    sb.drain("lgkm")
    a("s_barrier")
    for i in range(2):
        for e in range(2):
            sb.ds("ds_read_b64_tr_b16 %s, v%d offset:%d" % (vr(D + 4 * i + 2 * e, 2), T, e * 4 * 1088 + i * 128), "r%d" % i)
    for i in range(2):
        sb.need("lgkm", "r%d" % i)
        sb.vm("buffer_store_dwordx4 %s, v%d, s[%d:%d], s60 offen offset:%d %s" % (vr(D + 4 * i, 4), V + 8, SWS, SWS + 3, i * 1024, st_flags), "st")


def wdt_job(a, sb, V, sJ, lds, st_flags=""):
    srd(a, SW, P_WD, 1792 * 512 * 2)
    a("""
    s_lshl_b32 s60, s%d, 16
    s_lshl_b32 s61, s%d, 14
    s_add_u32 s60, s60, s61
    s_mul_i32 s62, s%d, %d
    s_add_u32 s62, s62, %d
    v_lshlrev_b32 v%d, 4, v1
    """ % (sJ, S_WV, S_WV, 16 * 1088, lds, V))
    for i in range(16):
        a("s_add_u32 m0, s62, %d" % (i * 1088))
        a("s_add_u32 s61, s60, %d" % (i * 1024))
        sb.vm("buffer_load_dwordx4 v%d, s[%d:%d], s61 offen lds" % (V, SW, SW + 3), "wd")
    a("""
    v_bfe_u32 v%d, v1, 2, 2
    v_lshrrev_b32 v%d, 5, v1
    v_lshl_add_u32 v%d, v%d, 2, v%d
    v_mul_u32_u24 v%d, 1088, v%d
    v_and_b32 v%d, 3, v1
    v_lshl_add_u32 v%d, v%d, 3, v%d
    v_bfe_u32 v%d, v1, 4, 1
    v_lshl_add_u32 v%d, v%d, 5, v%d
    v_add_u32 v%d, s62, v%d
    s_lshl_b32 s60, s%d, 2
    s_add_u32 s60, s60, s%d
    s_lshl_b32 s60, s60, 10
    s_add_u32 s60, s60, 0x%x
    """ % (V + 1, V + 2, V + 1, V + 2, V + 1, V + 1, V + 1, V + 2, V + 1, V + 2, V + 1, V + 2, V + 1, V + 2, V + 1, V + 1, V + 1,
           sJ, S_WV, WS_WDF))
    sb.need("vm", "wd")
    R = V + 4
    for dt in range(16):
        for e in range(2):
            sb.ds("ds_read_b64_tr_b16 %s, v%d offset:%d" % (vr(R + 4 * dt + 2 * e, 2), V + 1, e * 8 * 1088 + 64 * dt), "t%d" % dt)
        if dt >= 3:
            k = dt - 3
            sb.need("lgkm", "t%d" % k)
            a("s_add_u32 s61, s60, %d" % (k * 112 * 1024))
            sb.vm("buffer_store_dwordx4 %s, v%d, s[%d:%d], s61 offen %s" % (vr(R + 4 * k, 4), V, SWS, SWS + 3, st_flags), "st")
    for k in range(13, 16):
        sb.need("lgkm", "t%d" % k)
        a("s_add_u32 s61, s60, %d" % (k * 112 * 1024))
        sb.vm("buffer_store_dwordx4 %s, v%d, s[%d:%d], s61 offen %s" % (vr(R + 4 * k, 4), V, SWS, SWS + 3, st_flags), "st")


class G1:
    ACC = 128
    FR = 80
    DX, DW = 60, 68
    RA, RB = 72, 74
    CS, SEL = 52, 56
    STAGE = 49152
    S_RB, S_FU, S_KX, S_KW, S_SLOT, S_CNT, S_ORD, S_MX, S_MW = 64, 65, 66, 67, 68, 69, 70, 71, 72


def g1_setup(a, lds):
    g = G1
    a("""
    s_and_b32 s60, s%d, 1
    s_lshl_b32 s60, s60, 2
    s_and_b32 s61, s%d, 3
    s_add_u32 s%d, s60, s61
    s_lshr_b32 s60, s%d, 1
    s_mul_i32 s60, s60, 7
    s_lshr_b32 s61, s%d, 2
    s_add_u32 s%d, s60, s61
    s_cmp_lt_u32 s%d, 2
    s_cselect_b32 s%d, s%d, s%d
    s_cselect_b32 s%d, s%d, s%d
    s_mov_b32 s%d, 0x%x
    s_mov_b32 s%d, 0x20000
    """ % (S_XCD, S_LOC, g.S_RB, S_XCD, S_LOC, g.S_FU, S_WV, SW, P_WG, P_WU, SW + 1, P_WG + 1, P_WU + 1,
           SW + 2, 512 * 1792 * 2, SW + 3))
    a("""
    v_lshrrev_b32 v2, 3, v1
    v_and_b32 v3, 7, v1
    v_lshrrev_b32 v4, 4, v1
    v_xor_b32 v5, v3, v4
    v_lshlrev_b32 v5, 4, v5
    v_lshl_add_u32 v5, v2, 10, v5
    s_lshl_b32 s60, s%d, 18
    s_lshl_b32 s61, s%d, 16
    s_add_u32 s60, s60, s61
    v_add_u32 v5, s60, v5
    """ % (g.S_RB, S_WV))
    for i in range(8):
        a("v_add_u32 v%d, %d, v5" % (g.DX + i, i * 8192 - (i & 3) * 1024))
        if i & 1:
            a("v_xor_b32 v%d, 64, v%d" % (g.DX + i, g.DX + i))
    a("""
    s_lshr_b32 s60, s%d, 1
    s_lshl_b32 s60, s60, 2
    v_bfe_u32 v4, v1, 4, 1
    v_lshl_add_u32 v4, v4, 1, s60
    v_xor_b32 v4, v3, v4
    v_lshlrev_b32 v4, 4, v4
    v_mul_u32_u24 v5, 3584, v2
    v_add_u32 v5, v5, v4
    s_and_b32 s60, s%d, 1
    s_mul_i32 s60, s60, %d
    s_lshl_b32 s61, s%d, 7
    s_add_u32 s60, s60, s61
    v_add_u32 v5, s60, v5
    """ % (S_WV, S_WV, 32 * 3584, g.S_FU))
    for i in range(4):
        a("v_add_u32 v%d, %d, v5" % (g.DW + i, i * 8 * 3584 - i * 1024))
    a("""
    s_lshl_b32 s%d, s%d, 13
    s_lshl_b32 s%d, s%d, 12
    s_add_u32 s%d, s%d, 32768
    """ % (g.S_MX, S_WV, g.S_MW, S_WV, g.S_MW, g.S_MW))
    a("""
    v_bfe_u32 v2, v1, 4, 1
    v_lshrrev_b32 v3, 5, v1
    v_bfe_u32 v4, v1, 2, 2
    v_lshl_add_u32 v5, v3, 3, v4
    v_lshlrev_b32 v5, 7, v5
    v_lshl_add_u32 v5, v2, 13, v5
    v_lshrrev_b32 v4, 1, v4
    v_lshl_add_u32 v4, v2, 1, v4
    s_and_b32 s60, s%d, 1
    s_lshl_b32 s60, s60, 1
    v_xor_b32 v4, s60, v4
    v_lshl_add_u32 v5, v4, 5, v5
    v_and_b32 v4, 3, v1
    v_lshl_add_u32 v5, v4, 3, v5
    v_add_u32 v%d, %d, v5
    v_xor_b32 v%d, 32, v%d
    v_and_b32 v2, 31, v1
    v_bfe_u32 v4, v1, 1, 3
    v_xor_b32 v4, v3, v4
    v_lshlrev_b32 v4, 4, v4
    v_lshl_add_u32 v4, v2, 7, v4
    s_lshr_b32 s60, s%d, 1
    s_lshl_b32 s60, s60, 14
    s_add_u32 s60, s60, %d
    v_add_u32 v%d, s60, v4
    """ % (S_WV, g.RA, lds + 32768, g.RA + 1, g.RA, S_WV, lds, g.RB))
    for s in range(1, 4):
        a("v_xor_b32 v%d, %d, v%d" % (g.RB + s, 32 * s, g.RB))
    a("""
    v_and_b32 v2, 15, v1
    v_bfe_u32 v3, v1, 4, 1
    v_cmp_eq_u32 vcc, v2, v3
    v_mov_b32 v4, 0x3f803f80
    v_cndmask_b32 v%d, 0, v4, vcc
    """ % g.SEL)
    for i in range(1, 4):
        a("v_mov_b32 v%d, v%d" % (g.SEL + i, g.SEL))
    for i in range(4):
        a("v_mov_b32 v%d, 0" % (g.CS + i))


def g1_chunk(a, pos_expr):
    g = G1
    a("""
    s_add_u32 s60, s%d, %s
    s_and_b32 s60, s60, 3
    s_and_b32 s61, %s, 4
    s_or_b32 s60, s60, s61
    s_lshl_b32 s%d, s60, 7
    s_mul_i32 s%d, s60, %d
    """ % (g.S_ORD, pos_expr, pos_expr, g.S_KX, g.S_KW, 64 * 3584))


def g1_dma_list(slot_sreg, fl=""):
    g = G1
    L = []
    for h in range(2):
        L.append("s_add_u32 s62, s%d, s%d" % (slot_sreg, g.S_MX))
        L.append("s_add_u32 m0, s62, %d" % (4096 * h))
        for i in range(4):
            L.append("buffer_load_dwordx4 v%d, s[%d:%d], s%d offen offset:%d %s lds" % (g.DX + 4 * h + i, SX, SX + 3, g.S_KX, 1024 * i, fl))
    L.append("s_add_u32 m0, s%d, s%d" % (slot_sreg, g.S_MW))
    for i in range(4):
        L.append("buffer_load_dwordx4 v%d, s[%d:%d], s%d offen offset:%d %s lds" % (g.DW + i, SW, SW + 3, g.S_KW, 1024 * i, fl))
    return L


def g1_reads(s, fs):
    g = G1
    L = []
    f = g.FR + 24 * fs
    for t in range(2):
        for e in range(2):
            L.append("ds_read_b64_tr_b16 %s, v%d offset:%d" % (vr(f + 4 * t + 2 * e, 2), g.RA + t, s * 2048 + e * 512))
    for b in range(4):
        L.append("ds_read_b128 %s, v%d offset:%d" % (vr(f + 8 + 4 * b, 4), g.RB + s, b * 4096))
    return L


def g1_mfmas(fs, first=False):
    g = G1
    f = g.FR + 24 * fs
    L = []
    for b in range(4):
        for t in range(2):
            c = g.ACC + 16 * (2 * b + t)
            L.append("v_mfma_f32_32x32x16_bf16 %s, %s, %s, %s" % (vr(c, 16), vr(f + 4 * t, 4), vr(f + 8 + 4 * b, 4), "0" if first else vr(c, 16)))
    return L


def interleave(a, mf, fill, per_gap):
    fill = list(fill)
    for i, m in enumerate(mf):
        a(m)
        for _ in range(per_gap[i] if i < len(per_gap) else 0):
            if fill:
                a(fill.pop(0))
    for x in fill:
        a(x)


def g1_cs(wr, fs):
    g = G1
    return "v_mfma_f32_16x16x32_bf16 %s, %s, %s, %s" % (vr(g.CS, 4), vr(g.FR + 24 * fs + 4 * wr, 4), vr(g.SEL, 4), vr(g.CS, 4))


def g1_prefetch(a, lds, fl=""):
    g = G1
    a("s_add_u32 s%d, s%d, s%d" % (g.S_ORD, g.S_RB, g.S_FU))
    for st in range(2):
        g1_chunk(a, str(st))
        a("s_mov_b32 s63, %d" % (lds + st * g.STAGE))
        for x in g1_dma_list(63, fl):
            a(x)


def g1_main(a, lds, fl=""):
    g = G1
    for c in range(128):
        a("v_mov_b32 v%d, 0" % (g.ACC + c))
    a("""
    s_mov_b32 s%d, 0
    s_mov_b32 s%d, 0
    s_mov_b32 s74, %d
    s_waitcnt vmcnt(12)
    s_barrier
    """ % (g.S_CNT, g.S_SLOT, g.STAGE))
    for x in g1_reads(0, 0):
        a(x)
    g1_chunk(a, "2")
    a("s_mov_b32 s63, %d" % (lds + 2 * g.STAGE))
    for x in g1_dma_list(63, fl):
        a(x)
    a("s_cmp_ge_u32 s%d, 2\ns_cbranch_scc1 L_g1_w1" % S_WV)
    for wr in range(2):
        a("L_g1_w%d:" % wr)
        for s in range(3):
            a("s_waitcnt lgkmcnt(0)")
            mf = g1_mfmas(s & 1)
            mf.insert(5, g1_cs(wr, s & 1))
            interleave(a, mf, g1_reads(s + 1, (s + 1) & 1), [2, 2, 2, 2])
        a("""
        s_add_u32 s%d, s%d, 1
        s_cmp_ge_u32 s%d, 7
        s_cbranch_scc1 L_g1_d%d
        s_waitcnt vmcnt(12) lgkmcnt(0)
        s_branch L_g1_b%d
        L_g1_d%d:
        s_waitcnt vmcnt(0) lgkmcnt(0)
        L_g1_b%d:
        s_barrier
        s_add_u32 s63, s%d, %d
        s_add_u32 s%d, s%d, %d
        s_cmp_eq_u32 s%d, %d
        s_cselect_b32 s%d, 0, s%d
        s_cselect_b32 s62, %d, s74
        """ % (g.S_CNT, g.S_CNT, g.S_CNT, wr, wr, wr, wr, g.S_SLOT, lds, g.S_SLOT, g.S_SLOT, g.STAGE,
               g.S_SLOT, 3 * g.STAGE, g.S_SLOT, g.S_SLOT, -2 * g.STAGE))
        for r in [g.RA, g.RA + 1] + [g.RB + s for s in range(4)]:
            a("v_add_u32 v%d, s62, v%d" % (r, r))
        mf = g1_mfmas(1)
        mf.insert(5, g1_cs(wr, 1))
        a("s_cmp_ge_u32 s%d, 6\ns_cbranch_scc1 L_g1_n%d" % (g.S_CNT, wr))
        a("s_add_u32 s61, s%d, 2" % g.S_CNT)
        a("s_mov_b32 s73, s61")
        g1_chunk(a, "s73")
        interleave(a, mf, g1_reads(0, 0) + g1_dma_list(63, fl), [2, 2, 2, 2, 4, 2, 4, 4, 4])
        a("s_branch L_g1_w%d" % wr)
        a("L_g1_n%d:" % wr)
        a("s_cmp_eq_u32 s%d, 8\ns_cbranch_scc1 L_g1_e%d" % (g.S_CNT, wr))
        interleave(a, mf, g1_reads(0, 0), [2, 2, 2, 2])
        a("s_branch L_g1_w%d" % wr)
        a("L_g1_e%d:" % wr)
        for m in mf:
            a(m)
        if wr == 0:
            a("s_branch L_g1_done")
    a("L_g1_done:")


def g1_stats_issue(a, sb, V, fl=""):
    g = G1
    a("""
    s_lshl_b32 s60, s%d, 11
    s_lshr_b32 s61, s%d, 1
    s_lshl_b32 s61, s61, 10
    s_add_u32 s60, s60, s61
    s_add_u32 s60, s60, 0x%x
    v_and_b32 v2, 31, v1
    v_lshlrev_b32 v2, 3, v2
    """ % (g.S_RB, S_WV, WS_STATS))
    for b in range(4):
        sb.vm("buffer_load_dword v%d, v2, s[%d:%d], s60 offen offset:%d %s" % (V + b, SWS, SWS + 3, 256 * b, fl), "m")


def g1_epilogue(a, sb, V, lds, st_flags=""):
    g = G1
    X = g.FR
    a("""
    v_and_b32 v2, 15, v1
    v_lshrrev_b32 v3, 4, v1
    v_lshlrev_b32 v3, 4, v3
    v_lshl_add_u32 v3, v2, 6, v3
    s_and_b32 s60, s%d, 1
    s_lshl_b32 s60, s60, 8
    s_add_u32 s60, s60, %d
    s_lshr_b32 s61, s%d, 1
    s_lshl_b32 s61, s61, 7
    s_add_u32 s61, s61, s60
    v_add_u32 v3, s61, v3
    v_cmp_gt_u32 vcc, 2, v2
    s_and_saveexec_b64 s[62:63], vcc
    ds_write_b128 v3, %s
    s_mov_b64 exec, s[62:63]
    v_and_b32 v2, 31, v1
    v_lshl_add_u32 v2, v2, 2, s60
    s_waitcnt lgkmcnt(0)
    s_barrier
    ds_read_b32 v4, v2
    ds_read_b32 v5, v2 offset:128
    v_cmp_gt_u32 vcc, 32, v1
    """ % (S_WV, lds, S_WV, vr(g.CS, 4)))
    sb.need("vm", "m")
    for b in range(4):
        r = X + 8 + 4 * b
        a("v_xor_b32 v%d, 0x80000000, v%d" % (V + b, V + b))
        a("v_lshrrev_b32 v%d, 16, v%d" % (r + 1, V + b))
        a("v_or_b32 v%d, v%d, v%d" % (r, V + b, r + 1))
        a("v_mov_b32 v%d, 0\nv_mov_b32 v%d, 0" % (r + 2, r + 3))
    a("s_waitcnt lgkmcnt(0)")
    for t in range(2):
        c, r = 4 + t, X + 4 * t
        a("""
        v_cvt_pk_bf16_f32 v6, v%d, v%d
        v_and_b32 v7, 0xffff0000, v6
        v_sub_f32 v%d, v%d, v7
        v_cvt_pk_bf16_f32 v7, v%d, v%d
        v_and_b32 v8, 0xffff0000, v7
        v_sub_f32 v%d, v%d, v8
        v_cvt_pk_bf16_f32 v9, v%d, 0
        v_alignbit_b32 v6, v7, v6, 16
        v_cndmask_b32 v%d, 0, v6, vcc
        v_cndmask_b32 v%d, 0, v9, vcc
        v_mov_b32 v%d, 0
        v_mov_b32 v%d, 0
        """ % (c, c, c, c, c, c, c, c, c, r, r + 1, r + 2, r + 3))
    for m in g1_mfmas(0):
        a(m)
    a("""
    s_lshl_b32 s60, s%d, 3
    s_lshr_b32 s61, s%d, 1
    s_lshl_b32 s61, s61, 2
    s_add_u32 s60, s60, s61
    s_mul_i32 s60, s60, 112
    s_lshl_b32 s61, s%d, 2
    s_add_u32 s60, s60, s61
    s_and_b32 s61, s%d, 1
    s_lshl_b32 s61, s61, 1
    s_add_u32 s60, s60, s61
    s_lshl_b32 s60, s60, 10
    s_add_u32 s60, s60, 0x%x
    v_lshlrev_b32 v2, 4, v1
    """ % (g.S_RB, S_WV, g.S_FU, S_WV, WS_H))
    for b in range(4):
        for t in range(2):
            c = g.ACC + 16 * (2 * b + t)
            o = X + 24 + 4 * ((2 * b + t) & 3)
            for i in range(8):
                a("v_max_f32 v%d, 0, v%d" % (c + i, c + i))
            for i in range(4):
                a("v_pk_mul_f32 %s, %s, %s" % (vr(c + 2 * i, 2), vr(c + 2 * i, 2), vr(c + 8 + 2 * i, 2)))
            for i in range(4):
                a("v_cvt_pk_bf16_f32 v%d, v%d, v%d" % (o + i, c + 2 * i, c + 2 * i + 1))
            sb.vm("buffer_store_dwordx4 %s, v2, s[%d:%d], s60 offen offset:%d %s" % (vr(o, 4), SWS, SWS + 3, 1024 * t, st_flags), "st")
        a("s_add_u32 s60, s60, %d" % (112 * 1024))


S_P = 76
TCOPY = 4160
TCH = 4 * TCOPY
UCH = 4608
IDXC = 2 * (0x4300 - 128)


def cmul(a, d, p, z):
    a("v_pk_mul_f32 %s, %s, %s op_sel_hi:[1,0]" % (vr(d, 2), vr(p, 2), vr(z, 2)))
    a("v_pk_fma_f32 %s, %s, %s, %s op_sel:[1,1,0] op_sel_hi:[0,1,1] neg_lo:[0,1,0]" % (vr(d, 2), vr(p, 2), vr(z, 2), vr(d, 2)))


def cmul_n(a, jobs):
    for d, p, z in jobs:
        a("v_pk_mul_f32 %s, %s, %s op_sel_hi:[1,0]" % (vr(d, 2), vr(p, 2), vr(z, 2)))
    for d, p, z in jobs:
        a("v_pk_fma_f32 %s, %s, %s, %s op_sel:[1,1,0] op_sel_hi:[0,1,1] neg_lo:[0,1,0]" % (vr(d, 2), vr(p, 2), vr(z, 2), vr(d, 2)))


def kg_issue(a, sb, V):
    a("""
    s_lshl_b32 s%d, s%d, 5
    s_add_u32 s%d, s%d, s%d
    s_lshl_b32 s60, s%d, 9
    v_lshl_add_u32 v%d, v0, 1, s60
    s_lshl_b32 s60, s%d, 2
    s_load_dword s77, s[%d:%d], s60
    """ % (S_P, S_XCD, S_P, S_P, S_LOC, S_P, V + 6, S_P, P_LDT, P_LDT + 1))
    for i, p in enumerate((P_ARE, P_AIM, P_BRE, P_BIM, P_CRE, P_CIM)):
        sb.vm("global_load_ushort v%d, v%d, s[%d:%d]" % (V + i, V + 6, p, p + 1), "kp")


def kg_compute(a, sb, V, scr, xch, tab):
    Z1, Z8, Z256, Z16 = V + 8, V + 10, V + 12, V + 14
    AR, CB, T = V + 16, V + 18, V + 20
    PK = V + 32
    FE, FG = V + 64, V + 96
    AD = V + 6
    a("s_waitcnt lgkmcnt(0)")
    a("""
    s_lshr_b32 s60, s%d, 1
    s_lshl_b32 s60, s60, 4
    s_lshr_b32 s60, s77, s60
    s_lshl_b32 s60, s60, 16
    v_mov_b32 v%d, 0x%x
    v_mul_f32 v%d, s60, v%d
    v_exp_f32 v%d, v%d
    v_cvt_pk_bf16_f32 v%d, v%d, v%d
    v_and_b32 v%d, 0xffff0000, v%d
    """ % (S_WV, T, LOG2E, T, T, T, T, T, T, T, T, T))
    sb.need("vm", "kp")
    for i in range(6):
        a("v_lshlrev_b32 v%d, 16, v%d" % (V + i, V + i))
    a("v_pk_mul_f32 %s, %s, %s op_sel_hi:[1,0]" % (vr(AR, 2), vr(V, 2), vr(T, 2)))
    a("v_pk_mul_f32 %s, %s, %s op_sel_hi:[1,0]" % (vr(V + 2, 2), vr(V + 2, 2), vr(T, 2)))
    cmul(a, CB, V + 4, V + 2)
    import math
    zs = ((Z8, 8), (Z1, 1), (Z256, 256))
    for k, (z, l) in enumerate(zs):
        a("v_mul_f32 v%d, 0x%x, v%d" % (T + 2 * k, f2u(l * math.log2(math.e)), AR))
        a("v_mul_f32 v%d, 0x%x, v%d" % (T + 2 * k + 1, f2u(l / (2 * math.pi)), AR + 1))
    for k, (z, l) in enumerate(zs):
        a("v_fract_f32 v%d, v%d" % (T + 2 * k + 1, T + 2 * k + 1))
        a("v_exp_f32 v%d, v%d" % (T + 2 * k, T + 2 * k))
    for k, (z, l) in enumerate(zs):
        a("v_cos_f32 v%d, v%d" % (z, T + 2 * k + 1))
        a("v_sin_f32 v%d, v%d" % (z + 1, T + 2 * k + 1))
    for k, (z, l) in enumerate(zs):
        a("v_pk_mul_f32 %s, %s, %s op_sel_hi:[1,0]" % (vr(z, 2), vr(z, 2), vr(T + 2 * k, 2)))
    cmul(a, Z16, Z8, Z8)
    a("""
    v_bfe_u32 v%d, v1, 1, 1
    v_bfe_u32 v%d, v1, 2, 1
    v_lshlrev_b32 v%d, 6, v%d
    v_lshl_add_u32 v%d, v%d, 5, v%d
    v_and_b32 v%d, 1, v1
    v_lshl_add_u32 v%d, v%d, 4, v%d
    v_lshl_add_u32 v%d, v1, 7, v%d
    s_lshl_b32 s60, s%d, 13
    s_add_u32 s60, s60, %d
    v_add_u32 v%d, s60, v%d
    """ % (T, T + 1, T, T, T, T + 1, T, T + 1, T, T + 1, T, T, T, S_WV, scr, AD, T))
    e0, e1, n0, n1 = T, T + 2, T + 4, T + 6
    a("v_mov_b32 v%d, 1.0\nv_mov_b32 v%d, 0\nv_mov_b32 v%d, v%d\nv_mov_b32 v%d, v%d" % (e0, e0 + 1, e1, Z8, e1 + 1, Z8 + 1))
    for j in range(16):
        if j < 15:
            cmul_n(a, [(n0, e0, Z16), (n1, e1, Z16)])
        a("v_cvt_pk_bf16_f32 v%d, v%d, v%d" % (PK + j, e0, e1))
        a("v_cvt_pk_bf16_f32 v%d, v%d, v%d" % (PK + 16 + j, e0 + 1, e1 + 1))
        e0, e1, n0, n1 = n0, n1, e0, e1
        if j & 3 == 3:
            for p in (j >> 2, 4 + (j >> 2)):
                a("v_xor_b32 v%d, %d, v%d" % (T + 8, 16 * p, AD))
                sb.ds("ds_write_b128 v%d, %s" % (T + 8, vr(PK + 4 * p, 4)), "w")
    RD = V + 0
    a("""
    v_bfe_u32 v%d, v1, 2, 2
    v_lshrrev_b32 v%d, 5, v1
    v_lshl_add_u32 v%d, v%d, 3, v%d
    v_lshlrev_b32 v%d, 7, v%d
    v_bfe_u32 v%d, v1, 3, 1
    v_bfe_u32 v%d, v1, 4, 1
    v_lshlrev_b32 v%d, 2, v%d
    v_lshl_add_u32 v%d, v%d, 1, v%d
    v_bfe_u32 v%d, v1, 1, 1
    v_bfe_u32 v%d, v1, 2, 1
    v_xor_b32 v%d, v%d, v%d
    v_add_u32 v%d, v%d, v%d
    v_lshl_add_u32 v%d, v%d, 4, v%d
    v_and_b32 v%d, 1, v1
    v_lshl_add_u32 v%d, v%d, 3, v%d
    v_add_u32 v%d, s60, v%d
    v_xor_b32 v%d, 32, v%d
    v_xor_b32 v%d, 64, v%d
    v_xor_b32 v%d, 96, v%d
    """ % (T + 8, T + 9, T + 8, T + 9, T + 8, T + 8, T + 8,
           T + 9, T + 10, T + 9, T + 9, T + 9, T + 10, T + 9,
           T + 10, T + 11, T + 10, T + 10, T + 11, T + 9, T + 9, T + 10,
           T + 8, T + 9, T + 8, T + 9, T + 8, T + 9, T + 8, RD, T + 8,
           RD + 1, RD, RD + 2, RD, RD + 3, RD))

    def frag_reads(F, tag):
        for k in range(8):
            for e in range(2):
                sb.ds("ds_read_b64_tr_b16 %s, v%d offset:%d" % (vr(F + 4 * k + 2 * e, 2), RD + 2 * (k >> 2) + e, (k & 3) * 2048 + e * 512), tag)
    sb.need("lgkm", "w")
    frag_reads(FE, "fe")
    G = FG
    g = [FG + 2 * i for i in range(16)] + [T + 2 * i for i in range(5)]
    a("v_mov_b32 v%d, v%d\nv_mov_b32 v%d, v%d" % (g[0], CB, g[0] + 1, CB + 1))
    cmul_n(a, [(g[1], g[0], Z1), (Z16, Z1, Z1), (g[8], g[0], Z256)])
    cmul_n(a, [(g[2], g[0], Z16), (g[3], g[1], Z16), (g[12], g[8], Z256)])
    cmul_n(a, [(g[4], g[2], Z16), (g[5], g[3], Z16), (g[9], g[2], Z256), (g[14], g[12], Z256)])
    cmul_n(a, [(g[6], g[4], Z16), (g[7], g[5], Z16), (g[10], g[4], Z256), (g[16], g[14], Z256)])
    cmul_n(a, [(g[11], g[6], Z256), (g[13], g[10], Z256), (g[17], g[16], Z256)])
    cmul_n(a, [(g[15], g[13], Z256), (g[18], g[17], Z256)])
    cmul(a, g[19], g[18], Z256)
    cmul(a, g[20], g[19], Z256)
    for j in range(11):
        hi = g[2 * j + 1] if j < 10 else g[20]
        a("v_cvt_pk_bf16_f32 v%d, v%d, v%d" % (PK + j, g[2 * j], hi))
        a("v_cvt_pk_bf16_f32 v%d, -v%d, -v%d" % (PK + 16 + j, g[2 * j] + 1, hi + 1))
    sb.need("lgkm", "fe")
    for p in (0, 1, 2, 4, 5, 6):
        a("v_xor_b32 v%d, %d, v%d" % (Z1, 16 * p, AD))
        sb.ds("ds_write_b128 v%d, %s" % (Z1, vr(PK + 4 * p, 4)), "w")
    sb.need("lgkm", "w")
    frag_reads(FG, "fg")
    D = PK
    sb.need("lgkm", "fg")
    for k in range(8):
        a("v_mfma_f32_32x32x16_bf16 %s, %s, %s, %s" % (vr(D, 16), vr(FG + 4 * k, 4), vr(FE + 4 * k, 4), vr(D, 16) if k else "0"))
    a("""
    s_lshr_b32 s60, s%d, 1
    s_mul_i32 s61, s60, 3072
    s_add_u32 s61, s61, %d
    v_lshl_add_u32 v%d, v1, 4, s61
    s_mul_i32 s60, s60, 1536
    s_add_u32 s60, s60, %d
    s_bitcmp1_b32 s%d, 0
    s_cbranch_scc0 L_kg_even
    """ % (S_WV, xch, T, tab, S_WV))
    for i in range(3):
        a("ds_write_b128 v%d, %s offset:%d" % (T, vr(D + 4 * i, 4), 1024 * i))
    a("s_waitcnt lgkmcnt(0)\ns_barrier\ns_branch L_kg_join\nL_kg_even:\ns_barrier")
    for i in range(3):
        a("ds_read_b128 %s, v%d offset:%d" % (vr(FE + 4 * i, 4), T, 1024 * i))
    a("""
    v_and_b32 v%d, 31, v1
    v_lshrrev_b32 v%d, 5, v1
    v_lshlrev_b32 v%d, 3, v%d
    v_lshl_add_u32 v%d, v%d, 4, v%d
    v_add_u32 v%d, s60, v%d
    v_cmp_gt_u32 vcc, 32, v1
    v_lshlrev_b32 v%d, 3, v%d
    v_add_u32 v%d, 512, v%d
    v_lshlrev_b32 v%d, 2, v%d
    v_add_u32 v%d, 768, v%d
    v_cndmask_b32 v%d, v%d, v%d, vcc
    v_add_u32 v%d, s60, v%d
    v_mov_b32 v%d, 128
    v_cndmask_b32 v%d, v%d, 4, vcc
    v_add_u32 v%d, v%d, v%d
    v_lshlrev_b32 v%d, 8, v%d
    v_lshl_add_u32 v%d, v%d, 1, v%d
    v_add_u32 v%d, s60, v%d
    s_waitcnt lgkmcnt(0)
    """ % (T, T + 1, T + 2, T + 1, T + 2, T, T + 2, T + 2, T + 2,
           T + 3, T, T + 3, T + 3, T + 4, T, T + 4, T + 4, T + 3, T + 4, T + 3, T + 3, T + 3,
           T + 4, T + 4, T + 4, T + 4, T + 4, T + 3,
           T + 5, T + 1, T + 5, T, T + 5, T + 5, T + 5))
    for i in range(6):
        a("v_pk_add_f32 %s, %s, %s" % (vr(D + 2 * i, 2), vr(D + 2 * i, 2), vr(FE + 2 * i, 2)))
    for i in range(4):
        a("v_cvt_pk_bf16_f32 v%d, v%d, v%d" % (FE + i, D + 2 * i, D + 2 * i + 1))
    for i in range(4):
        a("v_cvt_pk_bf16_f32 v%d, v%d, v%d" % (FE + 4 + i, D + 8 + i, D + 8 + i))
    a("ds_write_b64 v%d, %s" % (T + 2, vr(FE, 2)))
    a("ds_write_b32 v%d, v%d\nds_write_b32 v%d, v%d" % (T + 3, FE + 2, T + 4, FE + 3))
    for i in range(4):
        a("ds_write_b16 v%d, v%d offset:%d" % (T + 5, FE + 4 + i, 1024 + 64 * i))
    a("s_waitcnt lgkmcnt(0)\nL_kg_join:")


def kg_expand(a, sb, V, tab, tcopies):
    AD, T, U = V, V + 12, V + 24
    D, D2, O, O2 = V + 36, V + 43, V + 48, V + 53
    a("""
    v_lshlrev_b32 v%d, 3, v0
    v_cvt_f32_u32 v%d, v%d
    v_lshlrev_b32 v%d, 4, v0
    v_cmp_gt_u32 vcc, 16, v0
    """ % (T, T, T, U))
    for i in range(1, 12):
        a("v_add_f32 v%d, 0x%x, v%d" % (T + i, f2u(float(i)), T))
    for i in range(6):
        a("v_cvt_pk_bf16_f32 v%d, v%d, v%d" % (T + 2 * i, T + 2 * i, T + 2 * i + 1))
    for i in range(11):
        a("v_lshlrev_b32_sdwa v%d, 1, v%d dst_sel:DWORD dst_unused:UNUSED_PAD src0_sel:DWORD src1_sel:WORD_%d" % (AD + i, T + 2 * (i >> 1), i & 1))
        a("v_add_u32 v%d, %d, v%d" % (T + 1, IDXC + 2 * i, U))
        a("v_cndmask_b32 v%d, v%d, v%d, vcc" % (AD + i, AD + i, T + 1))
    a("v_add_u32 v%d, %d, v%d" % (AD + 11, tcopies + 32, U))
    for ch in range(2):
        for i in range(11):
            sb.ds("ds_read_u16 v%d, v%d offset:%d" % ((T, U)[ch] + i, AD + i, tab - IDXC + 1536 * ch), "g%d" % ch)
    for ch in range(2):
        S = (T, U)[ch]
        sb.need("lgkm", "g%d" % ch)
        for k in range(5):
            a("v_lshl_or_b32 v%d, v%d, 16, v%d" % (D + k, S + 2 * k + 1, S + 2 * k))
        for k in range(1, 5):
            a("v_lshl_or_b32 v%d, v%d, 16, v%d" % (D2 + k, S + 2 * k + 1, S + 2 * k))
        for k in range(4):
            a("v_lshl_or_b32 v%d, v%d, 16, v%d" % (O + k, S + 2 * k + 2, S + 2 * k + 1))
        for k in range(1, 5):
            a("v_lshl_or_b32 v%d, v%d, 16, v%d" % (O2 + k, S + 2 * k + 2, S + 2 * k + 1))
        for phi, r in enumerate((D, O, D2 + 1, O2 + 1)):
            sb.ds("ds_write_b128 v%d, %s offset:%d" % (AD + 11, vr(r, 4), ch * TCH + phi * TCOPY), "w")
        Z = V + 58
        a("v_cmp_eq_u32 vcc, 0, v0\ns_and_saveexec_b64 s[62:63], vcc\ns_cbranch_execz L_kx_%d" % ch)
        a("v_mov_b32 v%d, %d" % (Z + 4, tcopies))
        for i in range(4):
            a("v_mov_b32 v%d, 0" % (Z + i))
        for phi in range(4):
            a("ds_write_b128 v%d, %s offset:%d" % (Z + 4, vr(Z, 4), ch * TCH + phi * TCOPY))
        a("ds_write_b128 v%d, %s offset:%d" % (Z + 4, vr(Z, 4), ch * TCH + 16))
        a("v_lshlrev_b32 v%d, 16, v%d" % (Z + 3, S))
        a("ds_write_b128 v%d, %s offset:%d" % (Z + 4, vr(Z, 4), ch * TCH + TCOPY + 16))
        a("v_mov_b32 v%d, v%d\nv_mov_b32 v%d, v%d" % (Z + 2, Z + 3, Z + 3, O))
        a("ds_write_b128 v%d, %s offset:%d" % (Z + 4, vr(Z, 4), ch * TCH + 3 * TCOPY + 16))
        a("v_mov_b32 v%d, 0\nv_mov_b32 v%d, v%d" % (Z + 2, Z + 3, D))
        a("ds_write_b128 v%d, %s offset:%d" % (Z + 4, vr(Z, 4), ch * TCH + 2 * TCOPY + 16))
        a("s_waitcnt lgkmcnt(0)\nL_kx_%d:\ns_mov_b64 exec, s[62:63]" % ch)


def conv_u_issue(a, sb, V, uimg, fl=""):
    a("""
    v_lshlrev_b32 v%d, 13, v0
    s_lshl_b32 s60, s%d, 5
    s_add_u32 s60, s60, 0x%x
    s_lshl_b32 s61, s%d, 10
    s_add_u32 m0, s61, %d
    """ % (V, S_P, WS_XNB, S_WV, uimg + 512))
    sb.vm("buffer_load_dwordx4 v%d, s[%d:%d], s60 offen %s lds" % (V, SWS, SWS + 3, fl), "u")
    a("s_add_u32 s60, s60, 16\ns_add_u32 m0, s61, %d" % (uimg + UCH + 512))
    sb.vm("buffer_load_dwordx4 v%d, s[%d:%d], s60 offen %s lds" % (V, SWS, SWS + 3, fl), "u")
    a("""
    v_lshrrev_b32 v%d, 7, v0
    v_mul_u32_u24 v%d, %d, v%d
    v_and_b32 v%d, 127, v0
    v_lshl_add_u32 v%d, v%d, 2, v%d
    v_mov_b32 v%d, 0
    """ % (V + 1, V + 1, UCH, V + 1, V + 2, V + 1, V + 2, V + 1, V + 2))
    sb.ds("ds_write_b32 v%d, v%d offset:%d" % (V + 1, V + 2, uimg), "w")


def conv_main(a, sb, V, uimg, tcopies, fill=None):
    ACC, FA, FB, RA, RB = V, V + 32, V + 64, V + 96, V + 97
    a("""
    v_and_b32 v2, 15, v1
    v_lshrrev_b32 v3, 4, v1
    v_add_u32 v4, 1, v2
    v_and_b32 v5, 3, v4
    v_mul_u32_u24 v5, %d, v5
    v_lshrrev_b32 v4, 2, v4
    v_lshl_add_u32 v5, v4, 3, v5
    v_lshl_add_u32 v5, v3, 4, v5
    s_lshr_b32 s60, s%d, 1
    s_and_b32 s61, s%d, 1
    s_lshl_b32 s61, s61, 8
    s_mul_i32 s62, s60, %d
    s_add_u32 s62, s62, s61
    s_add_u32 s62, s62, %d
    v_add_u32 v%d, s62, v5
    v_lshlrev_b32 v4, 5, v2
    v_lshlrev_b32 v3, 4, v3
    v_sub_u32 v4, v4, v3
    s_mul_i32 s62, s60, %d
    s_sub_u32 s62, s62, s61
    s_add_u32 s62, s62, %d
    v_add_u32 v%d, s62, v4
    """ % (TCOPY, S_WV, S_WV, TCH, tcopies, RA, UCH, uimg + 16 * 33 - 192, RB))

    def rd_a(mu, nu):
        for e in range(2):
            sb.ds("ds_read_b64 %s, v%d offset:%d" % (vr(FA + 4 * nu + 2 * e, 2), RA, 64 * mu + 512 * nu + 8 * e), ("a", mu, nu))

    def rd_b(mu, de):
        sb.ds("ds_read_b128 %s, v%d offset:%d" % (vr(FB + 4 * de, 4), RB, 512 * de + 64 * (3 - mu)), ("b", mu, de))
    rd_a(0, 0)
    for de in range(7, -1, -1):
        rd_b(0, de)
    for nu in range(1, 8):
        rd_a(0, nu)
    for mu in range(4):
        for nu in range(8):
            for j in range(7, nu - 1, -1):
                sb.need("lgkm", [("a", mu, nu), ("b", mu, j - nu)])
                c = ACC + 4 * j
                a("v_mfma_f32_16x16x32_bf16 %s, %s, %s, %s" % (vr(c, 4), vr(FA + 4 * nu, 4), vr(FB + 4 * (j - nu), 4),
                                                              "0" if mu == 0 and nu == 0 else vr(c, 4)))
                if mu < 3 and j == 7 and nu > 0:
                    rd_a(mu + 1, nu - 1)
                if mu < 3 and j == 7:
                    rd_b(mu + 1, 7 - nu)
                if fill:
                    fill(mu, nu, j)
            if mu < 3 and nu == 7:
                rd_a(mu + 1, 7)


def conv_out(a, sb, V, red, st_flags=""):
    ACC, T = V, V + 32
    a("s_lshl_b32 s60, s%d, 13\ns_add_u32 m0, s60, %d" % (S_WV, red))
    for r in range(32):
        sb.ds("ds_write_addtid_b32 v%d offset:%d" % (ACC + r, 256 * r), "w")
    a("""
    s_lshl_b32 s60, s%d, 11
    s_add_u32 m0, s60, %d
    s_lshl_b32 s60, s%d, 13
    s_lshl_b32 s61, s%d, 11
    s_add_u32 s60, s60, s61
    s_add_u32 s60, s60, 0x%x
    v_and_b32 v2, 15, v1
    v_lshrrev_b32 v3, 4, v1
    v_lshlrev_b32 v3, 4, v3
    v_lshl_add_u32 v2, v2, 6, v3
    """ % (S_WV, red, S_P, S_WV, WS_Y))
    sb.drain("lgkm")
    a("s_barrier")
    for t in range(2):
        for w in range(4):
            for r in range(4):
                sb.ds("ds_read_addtid_b32 v%d offset:%d" % (T + 16 * t + 4 * w + r, 8192 * w + 1024 * t + 256 * r), "r%d" % t)
    for t in range(2):
        sb.need("lgkm", "r%d" % t)
        b = T + 16 * t
        for h in range(2):
            for c in range(2):
                a("v_pk_add_f32 %s, %s, %s" % (vr(b + 8 * c + 2 * h, 2), vr(b + 8 * c + 2 * h, 2), vr(b + 8 * c + 4 + 2 * h, 2)))
        for r in range(4):
            a("v_cvt_pk_bf16_f32 v%d, v%d, v%d" % (ACC + 4 * t + r, b + r, b + 8 + r))
        sb.vm("buffer_store_dwordx4 %s, v2, s[%d:%d], s60 offen offset:%d %s" % (vr(ACC + 4 * t, 4), SWS, SWS + 3, 1024 * t, st_flags), "st")


S_R, S_CB, S_HO, S_WO = 78, 79, 80, 81
RPITCH = 272
RWAVE = 32 * RPITCH


def g2_setup(a):
    a("""
    s_lshl_b32 s60, s%d, 2
    s_lshr_b32 s61, s%d, 3
    s_add_u32 s%d, s60, s61
    s_and_b32 s%d, s%d, 7
    s_mul_i32 s60, s%d, 28
    s_mul_i32 s61, s%d, 224
    s_add_u32 s61, s61, s60
    s_lshl_b32 s61, s61, 10
    s_add_u32 s%d, s61, 0x%x
    s_mul_i32 s61, s%d, 224
    s_add_u32 s61, s61, s60
    s_lshl_b32 s61, s61, 10
    s_add_u32 s%d, s61, 0x%x
    """ % (S_XCD, S_LOC, S_R, S_CB, S_LOC, S_WV, S_R, S_HO, WS_H, S_CB, S_WO, WS_WDF))


def g2_wd_list(VA, fl=""):
    L = []
    for s in range(0, 28, 4):
        for dt in range(2):
            L.append("s_add_u32 s60, s%d, %d" % (S_WO, (dt * 112 + s) * 1024))
            for i in range(4):
                L.append("buffer_load_dwordx4 %s, v%d, s[%d:%d], s60 offen offset:%d %s" % (ar(8 * (s + i) + 4 * dt, 4), VA, SWS, SWS + 3, 1024 * i, fl))
    return L


def g2_side_issue(a, sb, V, yimg, fl=""):
    a("""
    v_bfe_u32 v2, v1, 3, 1
    v_bfe_u32 v3, v1, 4, 1
    v_lshl_add_u32 v2, v3, 2, v2
    v_lshrrev_b32 v3, 5, v1
    v_lshl_add_u32 v2, v3, 1, v2
    s_lshl_b32 s60, s%d, 6
    s_lshl_b32 s61, s%d, 3
    s_add_u32 s60, s60, s61
    v_add_u32 v3, s60, v2
    v_and_b32 v4, 7, v1
    v_lshlrev_b32 v4, 4, v4
    s_lshl_b32 s60, s%d, 7
    v_add_u32 v4, s60, v4
    v_lshl_add_u32 v%d, v3, 10, v4
    v_lshlrev_b32 v3, 3, v3
    s_mov_b32 s60, 32768
    s_mov_b32 s61, 0x%x
    """ % (S_R, S_WV, S_CB, V + 16, WS_STATS))
    sb.vm("buffer_load_dwordx4 %s, v%d, s[%d:%d], 0 offen" % (vr(V, 4), V + 16, SX, SX + 3), "side")
    sb.vm("buffer_load_dwordx4 %s, v%d, s[%d:%d], s60 offen" % (vr(V + 4, 4), V + 16, SX, SX + 3), "side")
    sb.vm("buffer_load_dwordx2 %s, v3, s[%d:%d], s61 offen %s" % (vr(V + 8, 2), SWS, SWS + 3, fl), "side")
    sb.vm("buffer_load_dwordx2 %s, v3, s[%d:%d], s61 offen offset:256 %s" % (vr(V + 10, 2), SWS, SWS + 3, fl), "side")
    sb.vm("global_load_dwordx4 %s, v4, s[%d:%d]" % (vr(V + 12, 4), P_DSK, P_DSK + 1), "side")
    a("""
    v_and_b32 v3, 3, v2
    s_lshl_b32 s60, s%d, 2
    v_add_u32 v3, s60, v3
    v_bfe_u32 v4, v1, 2, 1
    v_lshl_add_u32 v3, v4, 4, v3
    v_mul_u32_u24 v3, %d, v3
    v_lshrrev_b32 v4, 2, v2
    v_lshl_add_u32 v3, v4, 7, v3
    v_and_b32 v4, 3, v1
    v_lshl_add_u32 v%d, v4, 5, v3
    s_lshl_b32 s60, s%d, 1
    v_lshrrev_b32 v3, 2, v2
    v_add_u32 v3, s60, v3
    v_and_b32 v4, 7, v1
    v_xor_b32 v3, v3, v4
    v_lshlrev_b32 v3, 4, v3
    v_lshl_add_u32 v3, v4, 10, v3
    v_and_b32 v4, 3, v2
    v_lshl_add_u32 v3, v4, 2, v3
    v_add_u32 v%d, %d, v3
    """ % (S_WV, RPITCH, V + 17, S_WV, V + 18, yimg))


def g2_y_issue(a, sb, yimg, fl=""):
    a("""
    v_lshrrev_b32 v2, 4, v1
    v_and_b32 v3, 15, v1
    s_lshl_b32 s60, s%d, 1
    v_xor_b32 v3, s60, v3
    v_lshlrev_b32 v3, 4, v3
    v_lshl_add_u32 v2, v2, 13, v3
    v_xor_b32 v3, 16, v2
    s_lshl_b32 s60, s%d, 18
    s_lshl_b32 s61, s%d, 16
    s_add_u32 s60, s60, s61
    s_lshl_b32 s61, s%d, 8
    s_add_u32 s60, s60, s61
    s_add_u32 s60, s60, 0x%x
    s_lshl_b32 s61, s%d, 11
    s_add_u32 m0, s61, %d
    """ % (S_WV, S_CB, S_WV, S_R, WS_Y, S_WV, yimg))
    sb.vm("buffer_load_dwordx4 v2, s[%d:%d], s60 offen %s lds" % (SWS, SWS + 3, fl), "y")
    a("s_add_u32 s60, s60, 32768\ns_add_u32 m0, s61, %d" % (yimg + 1024))
    sb.vm("buffer_load_dwordx4 v3, s[%d:%d], s60 offen %s lds" % (SWS, SWS + 3, fl), "y")


def g2_base(a, sb, V, tb, B):
    X, Y, Dk = B + 8, B + 16, B + 24
    for i in range(4):
        sb.ds("ds_read_b32 v%d, v%d offset:%d" % (Dk + i, V + 18, 256 * i + 128 * tb), "yr")
    unpack(a, X, V + 4 * tb, 4)
    unpack(a, B, V + 12, 4)
    st = V + 8 + 2 * tb
    for j in range(4):
        a("v_pk_mul_f32 %s, %s, %s op_sel:[0,1]" % (vr(B + 2 * j, 2), vr(B + 2 * j, 2), vr(st, 2)))
    sb.need("lgkm", "yr")
    unpack(a, Y, Dk, 4)
    for j in range(4):
        a("v_pk_add_f32 %s, %s, %s" % (vr(Y + 2 * j, 2), vr(Y + 2 * j, 2), vr(X + 2 * j, 2)))
        a("v_pk_add_f32 %s, %s, %s op_sel_hi:[1,0] neg_lo:[0,1] neg_hi:[0,1]" % (vr(X + 2 * j, 2), vr(X + 2 * j, 2), vr(st, 2)))
    for j in range(4):
        a("v_pk_fma_f32 %s, %s, %s, %s" % (vr(B + 2 * j, 2), vr(B + 2 * j, 2), vr(X + 2 * j, 2), vr(Y + 2 * j, 2)))
    a("v_mul_f32 v%d, v%d, v%d" % (st + 1, st + 1, st + 1))


def g2_put(a, sb, ACC, red):
    a("s_mul_i32 s60, s%d, %d\ns_add_u32 m0, s60, %d" % (S_WV, RWAVE, red))
    for r in range(32):
        sb.ds("ds_write_addtid_b32 v%d offset:%d" % (ACC + r, RPITCH * r), "w")


def g2_finish(a, sb, V, tb, B, T, red):
    for q in range(4):
        for h in range(2):
            sb.ds("ds_read_b128 %s, v%d offset:%d" % (vr(T + 8 * q + 4 * h, 4), V + 17, red + RWAVE * q + 16 * h), "p%d" % (q >> 1))
    for q in (0, 2):
        sb.need("lgkm", "p%d" % (q >> 1))
        for j in range(4):
            a("v_pk_add_f32 %s, %s, %s" % (vr(T + 8 * q + 2 * j, 2), vr(T + 8 * q + 2 * j, 2), vr(T + 8 * q + 8 + 2 * j, 2)))
    for j in range(4):
        a("v_pk_add_f32 %s, %s, %s" % (vr(T + 2 * j, 2), vr(T + 2 * j, 2), vr(T + 16 + 2 * j, 2)))
    for j in range(4):
        a("v_pk_fma_f32 %s, %s, %s, %s op_sel:[0,1,0]" % (vr(T + 2 * j, 2), vr(T + 2 * j, 2), vr(V + 8 + 2 * tb, 2), vr(B + 2 * j, 2)))
    for j in range(4):
        a("v_cvt_pk_bf16_f32 v%d, v%d, v%d" % (T + 8 + j, T + 2 * j, T + 2 * j + 1))
    a("s_mov_b32 s60, %d" % (32768 * tb))
    sb.vm("buffer_store_dwordx4 %s, v%d, s[%d:%d], s60 offen" % (vr(T + 8, 4), V + 16, SO, SO + 3), "st")
```

```python
import sys
from parts import *

DESC = """.amdhsa_kernel %s
  .amdhsa_next_free_vgpr 512
  .amdhsa_next_free_sgpr 102
  .amdhsa_accum_offset 256
  .amdhsa_group_segment_fixed_size 0
  .amdhsa_kernarg_size 128
  .amdhsa_user_sgpr_count 2
  .amdhsa_user_sgpr_kernarg_segment_ptr 1
  .amdhsa_system_sgpr_workgroup_id_x 1
.end_amdhsa_kernel
"""


def k_prep():
    a = Asm(); sb = Sb(a)
    prologue(a, "L_p_end")
    ln_issue(a, sb, 8, 75)
    ln_compute(a, sb, 8, 75, 0)
    a("s_cmp_lt_u32 s%d, 28\ns_cbranch_scc1 L_p_end" % S_LOC)
    a("s_lshl_b32 s64, s%d, 2\ns_add_u32 s64, s64, s%d\ns_sub_u32 s64, s64, 28" % (S_XCD, S_LOC))
    a("s_cmp_ge_u32 s64, 28\ns_cbranch_scc1 L_p_end")
    wdt_job(a, sb, 64, 64, 16384)
    a("L_p_end:\ns_endpgm")
    return a


def k_g1():
    a = Asm(); sb = Sb(a)
    prologue(a, "L_1_end")
    a("s_cmp_ge_u32 s%d, 28\ns_cbranch_scc1 L_1_end" % S_LOC)
    g1_setup(a, 0)
    g1_stats_issue(a, sb, 48)
    g1_prefetch(a, 0)
    g1_main(a, 0)
    g1_epilogue(a, sb, 48, 3 * G1.STAGE)
    a("L_1_end:\ns_endpgm")
    return a


def k_conv():
    a = Asm(); sb = Sb(a)
    prologue(a, "L_c_end")
    RED, SCR, XCH, TAB, UI, TC = 0, 0, 32768, 40960, 45056, 57344
    kg_issue(a, sb, 8)
    conv_u_issue(a, sb, 140, UI)
    kg_compute(a, sb, 8, SCR, XCH, TAB)
    a("s_barrier")
    kg_expand(a, sb, 8, TAB, TC)
    sb.drain("vm", "lgkm")
    a("s_barrier")
    conv_main(a, sb, 8, UI, TC)
    conv_out(a, sb, 8, RED)
    a("L_c_end:\ns_endpgm")
    return a


def k_g2():
    a = Asm(); sb = Sb(a)
    prologue(a, "L_2_end")
    RED, YI = 0, 2 * 4 * RWAVE
    g2_setup(a)
    V, VA, ACC, H, B, T = 8, 28, 32, 96, 160, 192
    a("v_lshlrev_b32 v%d, 4, v1" % VA)
    g2_side_issue(a, sb, V, YI)
    g2_y_issue(a, sb, YI)
    for x in g2_wd_list(VA):
        (sb.vm(x, "wd") if x.startswith("buffer") else a(x))
    NR = 16

    def ld(i):
        tb, s = divmod(i, 28)
        if i % 4 == 0:
            a("s_add_u32 s62, s%d, %d" % (S_HO, (tb * 112 + s) * 1024))
        sb.vm("buffer_load_dwordx4 %s, v%d, s[%d:%d], s62 offen offset:%d" % (vr(H + 4 * (i % NR), 4), VA, SWS, SWS + 3, 1024 * (i % 4)), ("h", i))
    sb.need("vm", ["side", "y"])
    a("s_barrier")
    for i in range(NR):
        ld(i)
    for tb in range(2):
        g2_base(a, sb, V, tb, B)
        for s in range(28):
            i = 28 * tb + s
            sb.need("vm", [("h", i), "wd"])
            for dt in range(2):
                c = ACC + 32 * tb + 16 * dt
                a("v_mfma_f32_32x32x16_bf16 %s, %s, %s, %s" % (vr(c, 16), vr(H + 4 * (i % NR), 4), ar(8 * s + 4 * dt, 4), vr(c, 16) if s else "0"))
            if i + NR < 56:
                ld(i + NR)
        g2_put(a, sb, ACC + 32 * tb, RED + tb * 4 * RWAVE)
        sb.drain("lgkm")
        a("s_barrier")
        g2_finish(a, sb, V, tb, B, T, RED + tb * 4 * RWAVE)
    a("L_2_end:\ns_endpgm")
    return a


def build():
    ref = open("cdna_kernels/%s.s.ref" % NAME).read().split("\n")
    head = [l for l in ref if l.startswith(";") and "@launch" not in l and "Override" not in l and "grid=ceil" not in l][:17]
    ks = [("prep_kernel", k_prep, 98304), ("gemm1_kernel", k_g1, 160 * 1024), ("conv_kernel", k_conv, 98304), ("gemm2_kernel", k_g2, 98304)]
    out = head + ["; @launch kernel=%s grid=(256,1,1) block=(256,1,1) lds=%d" % (n, l) for n, f, l in ks]
    out += ['.amdgcn_target "amdgcn-amd-amdhsa--gfx950"', ".text"]
    for n, f, l in ks:
        out += [".globl %s" % n, ".p2align 8", ".type %s,@function" % n, "%s:" % n, f().finish(True)]
    out += ['.section .rodata,"a"']
    for n, f, l in ks:
        out += [".p2align 6", DESC % n]
    return "\n".join(out)


if __name__ == "__main__":
    open(sys.argv[1], "w").write(build())
```

```python
from asmlib import *

NAME = "parallel_sum__ssm_conv_s4__glu_gated_reglu__prompt"
WS_STATS, WS_XNB, WS_Y, WS_WDF, WS_H = 0x10000, 0x100000, 0x300000, 0x500000, 0x700000
P_U, P_ARE, P_AIM, P_BRE, P_BIM, P_CRE, P_CIM, P_LDT, P_DSK, P_BX, P_WG, P_WU, P_WD, P_OUT, P_DBG, P_WS = range(8, 40, 2)
SX, SW, SWS, SO = 40, 44, 48, 52
S_WV, S_XCD, S_LOC = 56, 57, 58
LOG2E = 0x3fb8aa3b
INV2PI = 0x3e22f983


def f2u(x):
    import struct
    return struct.unpack("<I", struct.pack("<f", x))[0]


def srd(a, dst, ptr, size):
    a("s_mov_b32 s%d, s%d\ns_mov_b32 s%d, s%d\ns_mov_b32 s%d, 0x%x\ns_mov_b32 s%d, 0x20000" %
      (dst, ptr, dst + 1, ptr + 1, dst + 2, size, dst + 3))


def prologue(a, end_label):
    a("""
    s_cmp_ge_u32 s2, 256
    s_cbranch_scc1 %s
    s_load_dwordx16 s[8:23], s[0:1], 0
    s_load_dwordx16 s[24:39], s[0:1], 64
    v_lshrrev_b32 v2, 6, v0
    v_and_b32 v1, 63, v0
    v_readfirstlane_b32 s%d, v2
    s_and_b32 s%d, s2, 7
    s_lshr_b32 s%d, s2, 3
    s_waitcnt lgkmcnt(0)
    """ % (end_label, S_WV, S_XCD, S_LOC))
    srd(a, SX, P_U, 2048 * 512 * 2)
    srd(a, SWS, P_WS, 0x1000000)
    srd(a, SO, P_OUT, 2048 * 512 * 2)


def unpack(a, dst, src, n):
    for i in range(n):
        a("v_lshlrev_b32 v%d, 16, v%d" % (dst + 2 * i, src + i))
        a("v_and_b32 v%d, 0xffff0000, v%d" % (dst + 2 * i + 1, src + i))


def wave_allsum(a, vals, tmps):
    for sh in (8, 4, 2, 1):
        for v in vals:
            a("v_add_f32_dpp v%d, v%d, v%d row_ror:%d row_mask:0xf bank_mask:0xf" % (v, v, v, sh))
    for op in ("v_permlane16_swap_b32", "v_permlane32_swap_b32"):
        for v, t in zip(vals, tmps):
            a("v_mov_b32 v%d, v%d" % (t, v))
        for v, t in zip(vals, tmps):
            a("%s v%d, v%d" % (op, v, t))
        for v, t in zip(vals, tmps):
            a("v_add_f32 v%d, v%d, v%d" % (v, v, t))


def ln_issue(a, sb, V, sW):
    a("""
    s_and_b32 s60, s%d, 1
    s_lshl_b32 s60, s60, 7
    s_lshr_b32 s61, s%d, 1
    s_lshl_b32 s61, s61, 5
    s_add_u32 s60, s60, s61
    s_add_u32 s%d, s60, s%d
    s_lshl_b32 s60, s%d, 13
    s_lshl_b32 s61, s%d, 11
    s_add_u32 s60, s60, s61
    v_lshlrev_b32 v%d, 4, v1
    """ % (S_XCD, S_XCD, sW, S_LOC, sW, S_WV, V + 8))
    sb.vm("buffer_load_dwordx4 %s, v%d, s[%d:%d], s60 offen" % (vr(V, 4), V + 8, SX, SX + 3), "ln")
    sb.vm("buffer_load_dwordx4 %s, v%d, s[%d:%d], s60 offen offset:1024" % (vr(V + 4, 4), V + 8, SX, SX + 3), "ln")


def ln_compute(a, sb, V, sW, lds, st_flags=""):
    F = (V + 10, V + 18)
    T = V + 26
    S = (V + 34, V + 36)
    sb.need("vm", "ln")
    for i in range(2):
        unpack(a, F[i], V + 4 * i, 4)
    for i in range(2):
        f, t = F[i], T + 4 * i
        a("v_pk_add_f32 %s, %s, %s" % (vr(t, 2), vr(f, 2), vr(f + 2, 2)))
        a("v_pk_add_f32 %s, %s, %s" % (vr(t + 2, 2), vr(f + 4, 2), vr(f + 6, 2)))
    for i in range(2):
        t = T + 4 * i
        a("v_pk_add_f32 %s, %s, %s" % (vr(t, 2), vr(t, 2), vr(t + 2, 2)))
    for i in range(2):
        a("v_add_f32 v%d, v%d, v%d" % (S[i], T + 4 * i, T + 4 * i + 1))
    wave_allsum(a, [S[0], S[1]], [T, T + 1])
    for i in range(2):
        a("v_mul_f32 v%d, 0x%x, v%d" % (S[i], f2u(1.0 / 512), S[i]))
    D = V + 38
    for i in range(2):
        for j in range(4):
            a("v_pk_add_f32 %s, %s, %s op_sel_hi:[1,0] neg_lo:[0,1] neg_hi:[0,1]" % (vr(D + 2 * j, 2), vr(F[i] + 2 * j, 2), vr(S[i], 2)))
        t = T + 4 * i
        a("v_pk_mul_f32 %s, %s, %s" % (vr(t, 2), vr(D, 2), vr(D, 2)))
        a("v_pk_mul_f32 %s, %s, %s" % (vr(t + 2, 2), vr(D + 2, 2), vr(D + 2, 2)))
        a("v_pk_fma_f32 %s, %s, %s, %s" % (vr(t, 2), vr(D + 4, 2), vr(D + 4, 2), vr(t, 2)))
        a("v_pk_fma_f32 %s, %s, %s, %s" % (vr(t + 2, 2), vr(D + 6, 2), vr(D + 6, 2), vr(t + 2, 2)))
        a("v_pk_add_f32 %s, %s, %s" % (vr(t, 2), vr(t, 2), vr(t + 2, 2)))
        a("v_add_f32 v%d, v%d, v%d" % (S[i] + 1, t, t + 1))
    wave_allsum(a, [S[0] + 1, S[1] + 1], [T, T + 1])
    for i in range(2):
        a("v_mul_f32 v%d, 0x%x, v%d" % (S[i] + 1, f2u(1.0 / 512), S[i] + 1))
    for i in range(2):
        a("v_cvt_pk_bf16_f32 v%d, v%d, v%d" % (T + i, S[i], S[i] + 1))
    for i in range(2):
        a("v_lshlrev_b32 v%d, 16, v%d" % (S[i], T + i))
        a("v_and_b32 v%d, 0xffff0000, v%d" % (S[i] + 1, T + i))
    for i in range(2):
        a("v_add_f32 v%d, 0x%x, v%d" % (S[i] + 1, f2u(1e-5), S[i] + 1))
    a("v_cvt_pk_bf16_f32 v%d, v%d, v%d" % (T, S[0] + 1, S[1] + 1))
    a("v_lshlrev_b32 v%d, 16, v%d" % (T + 1, T))
    a("v_and_b32 v%d, 0xffff0000, v%d" % (T + 2, T))
    a("v_sqrt_f32 v%d, v%d" % (T + 1, T + 1))
    a("v_sqrt_f32 v%d, v%d" % (T + 2, T + 2))
    a("v_cvt_pk_bf16_f32 v%d, v%d, v%d" % (T, T + 1, T + 2))
    a("v_lshlrev_b32 v%d, 16, v%d" % (T + 1, T))
    a("v_and_b32 v%d, 0xffff0000, v%d" % (T + 2, T))
    a("v_rcp_f32 v%d, v%d" % (S[0] + 1, T + 1))
    a("v_rcp_f32 v%d, v%d" % (S[1] + 1, T + 2))
    a("""
    s_lshl_b32 s60, s%d, 6
    s_lshl_b32 s61, s%d, 4
    s_add_u32 s60, s60, s61
    s_add_u32 s60, s60, 0x%x
    v_mov_b32 v%d, 0
    s_mov_b64 exec, 1
    """ % (sW, S_WV, WS_STATS, T))
    sb.vm("buffer_store_dwordx4 %s, v%d, s[%d:%d], s60 offen %s" % (vr(S[0], 4), T, SWS, SWS + 3, st_flags), "st")
    a("s_mov_b64 exec, -1")
    a("s_mul_i32 s60, s%d, %d" % (S_WV, -2 * 1088))
    a("s_add_u32 s60, s60, %d" % (lds + 6 * 1088))
    a("v_add_u32 v%d, s60, v%d" % (V + 9, V + 8))
    for i in range(2):
        for j in range(4):
            a("v_pk_add_f32 %s, %s, %s op_sel_hi:[1,0] neg_lo:[0,1] neg_hi:[0,1]" % (vr(D + 2 * j, 2), vr(F[i] + 2 * j, 2), vr(S[i], 2)))
        for j in range(4):
            a("v_cvt_pk_bf16_f32 v%d, v%d, v%d" % (T + j, D + 2 * j, D + 2 * j + 1))
        unpack(a, D, T, 4)
        for j in range(4):
            a("v_pk_mul_f32 %s, %s, %s op_sel:[0,1]" % (vr(D + 2 * j, 2), vr(D + 2 * j, 2), vr(S[i], 2)))
        for j in range(4):
            a("v_cvt_pk_bf16_f32 v%d, v%d, v%d" % (V + 4 * i + j, D + 2 * j, D + 2 * j + 1))
        sb.ds("ds_write_b128 v%d, %s offset:%d" % (V + 9, vr(V + 4 * i, 4), (1 - i) * 1088), "w")
    a("""
    v_bfe_u32 v%d, v1, 2, 2
    v_mul_u32_u24 v%d, 1088, v%d
    v_and_b32 v%d, 3, v1
    v_lshl_add_u32 v%d, v%d, 3, v%d
    v_lshrrev_b32 v%d, 4, v1
    v_lshl_add_u32 v%d, v%d, 5, v%d
    s_lshl_b32 s60, s%d, 8
    s_add_u32 s60, s60, %d
    v_add_u32 v%d, s60, v%d
    s_lshl_b32 s60, s%d, 13
    s_lshl_b32 s61, s%d, 11
    s_add_u32 s60, s60, s61
    s_add_u32 s60, s60, 0x%x
    """ % (T, T, T, T + 1, T, T + 1, T, T + 1, T, T + 1, T, S_WV, lds, T, T, sW, S_WV, WS_XNB))
    sb.drain("lgkm")
    a("s_barrier")
    for i in range(2):
        for e in range(2):
            sb.ds("ds_read_b64_tr_b16 %s, v%d offset:%d" % (vr(D + 4 * i + 2 * e, 2), T, e * 4 * 1088 + i * 128), "r%d" % i)
    for i in range(2):
        sb.need("lgkm", "r%d" % i)
        sb.vm("buffer_store_dwordx4 %s, v%d, s[%d:%d], s60 offen offset:%d %s" % (vr(D + 4 * i, 4), V + 8, SWS, SWS + 3, i * 1024, st_flags), "st")


def wdt_job(a, sb, V, sJ, lds, st_flags=""):
    srd(a, SW, P_WD, 1792 * 512 * 2)
    a("""
    s_lshl_b32 s60, s%d, 16
    s_lshl_b32 s61, s%d, 14
    s_add_u32 s60, s60, s61
    s_mul_i32 s62, s%d, %d
    s_add_u32 s62, s62, %d
    v_lshlrev_b32 v%d, 4, v1
    """ % (sJ, S_WV, S_WV, 16 * 1088, lds, V))
    for i in range(16):
        a("s_add_u32 m0, s62, %d" % (i * 1088))
        a("s_add_u32 s61, s60, %d" % (i * 1024))
        sb.vm("buffer_load_dwordx4 v%d, s[%d:%d], s61 offen lds" % (V, SW, SW + 3), "wd")
    a("""
    v_bfe_u32 v%d, v1, 2, 2
    v_lshrrev_b32 v%d, 5, v1
    v_lshl_add_u32 v%d, v%d, 2, v%d
    v_mul_u32_u24 v%d, 1088, v%d
    v_and_b32 v%d, 3, v1
    v_lshl_add_u32 v%d, v%d, 3, v%d
    v_bfe_u32 v%d, v1, 4, 1
    v_lshl_add_u32 v%d, v%d, 5, v%d
    v_add_u32 v%d, s62, v%d
    s_lshl_b32 s60, s%d, 2
    s_add_u32 s60, s60, s%d
    s_lshl_b32 s60, s60, 10
    s_add_u32 s60, s60, 0x%x
    """ % (V + 1, V + 2, V + 1, V + 2, V + 1, V + 1, V + 1, V + 2, V + 1, V + 2, V + 1, V + 2, V + 1, V + 2, V + 1, V + 1, V + 1,
           sJ, S_WV, WS_WDF))
    sb.need("vm", "wd")
    R = V + 4
    for dt in range(16):
        for e in range(2):
            sb.ds("ds_read_b64_tr_b16 %s, v%d offset:%d" % (vr(R + 4 * dt + 2 * e, 2), V + 1, e * 8 * 1088 + 64 * dt), "t%d" % dt)
        if dt >= 3:
            k = dt - 3
            sb.need("lgkm", "t%d" % k)
            a("s_add_u32 s61, s60, %d" % (k * 112 * 1024))
            sb.vm("buffer_store_dwordx4 %s, v%d, s[%d:%d], s61 offen %s" % (vr(R + 4 * k, 4), V, SWS, SWS + 3, st_flags), "st")
    for k in range(13, 16):
        sb.need("lgkm", "t%d" % k)
        a("s_add_u32 s61, s60, %d" % (k * 112 * 1024))
        sb.vm("buffer_store_dwordx4 %s, v%d, s[%d:%d], s61 offen %s" % (vr(R + 4 * k, 4), V, SWS, SWS + 3, st_flags), "st")


class G1:
    ACC = 128
    FR = 80
    DX, DW = 60, 68
    RA, RB = 72, 74
    CS, SEL = 52, 56
    STAGE = 49152
    S_RB, S_FU, S_KX, S_KW, S_SLOT, S_CNT, S_ORD, S_MX, S_MW = 64, 65, 66, 67, 68, 69, 70, 71, 72


def g1_setup(a, lds):
    g = G1
    a("""
    s_and_b32 s60, s%d, 1
    s_lshl_b32 s60, s60, 2
    s_and_b32 s61, s%d, 3
    s_add_u32 s%d, s60, s61
    s_lshr_b32 s60, s%d, 1
    s_mul_i32 s60, s60, 7
    s_lshr_b32 s61, s%d, 2
    s_add_u32 s%d, s60, s61
    s_cmp_lt_u32 s%d, 2
    s_cselect_b32 s%d, s%d, s%d
    s_cselect_b32 s%d, s%d, s%d
    s_mov_b32 s%d, 0x%x
    s_mov_b32 s%d, 0x20000
    """ % (S_XCD, S_LOC, g.S_RB, S_XCD, S_LOC, g.S_FU, S_WV, SW, P_WG, P_WU, SW + 1, P_WG + 1, P_WU + 1,
           SW + 2, 512 * 1792 * 2, SW + 3))
    a("""
    v_lshrrev_b32 v2, 3, v1
    v_and_b32 v3, 7, v1
    v_lshrrev_b32 v4, 4, v1
    v_xor_b32 v5, v3, v4
    v_lshlrev_b32 v5, 4, v5
    v_lshl_add_u32 v5, v2, 10, v5
    s_lshl_b32 s60, s%d, 18
    s_lshl_b32 s61, s%d, 16
    s_add_u32 s60, s60, s61
    v_add_u32 v5, s60, v5
    """ % (g.S_RB, S_WV))
    for i in range(8):
        a("v_add_u32 v%d, %d, v5" % (g.DX + i, i * 8192 - (i & 3) * 1024))
        if i & 1:
            a("v_xor_b32 v%d, 64, v%d" % (g.DX + i, g.DX + i))
    a("""
    s_lshr_b32 s60, s%d, 1
    s_lshl_b32 s60, s60, 2
    v_bfe_u32 v4, v1, 4, 1
    v_lshl_add_u32 v4, v4, 1, s60
    v_xor_b32 v4, v3, v4
    v_lshlrev_b32 v4, 4, v4
    v_mul_u32_u24 v5, 3584, v2
    v_add_u32 v5, v5, v4
    s_and_b32 s60, s%d, 1
    s_mul_i32 s60, s60, %d
    s_lshl_b32 s61, s%d, 7
    s_add_u32 s60, s60, s61
    v_add_u32 v5, s60, v5
    """ % (S_WV, S_WV, 32 * 3584, g.S_FU))
    for i in range(4):
        a("v_add_u32 v%d, %d, v5" % (g.DW + i, i * 8 * 3584 - i * 1024))
    a("""
    s_lshl_b32 s%d, s%d, 13
    s_lshl_b32 s%d, s%d, 12
    s_add_u32 s%d, s%d, 32768
    """ % (g.S_MX, S_WV, g.S_MW, S_WV, g.S_MW, g.S_MW))
    a("""
    v_bfe_u32 v2, v1, 4, 1
    v_lshrrev_b32 v3, 5, v1
    v_bfe_u32 v4, v1, 2, 2
    v_lshl_add_u32 v5, v3, 3, v4
    v_lshlrev_b32 v5, 7, v5
    v_lshl_add_u32 v5, v2, 13, v5
    v_lshrrev_b32 v4, 1, v4
    v_lshl_add_u32 v4, v2, 1, v4
    s_and_b32 s60, s%d, 1
    s_lshl_b32 s60, s60, 1
    v_xor_b32 v4, s60, v4
    v_lshl_add_u32 v5, v4, 5, v5
    v_and_b32 v4, 3, v1
    v_lshl_add_u32 v5, v4, 3, v5
    v_add_u32 v%d, %d, v5
    v_xor_b32 v%d, 32, v%d
    v_and_b32 v2, 31, v1
    v_bfe_u32 v4, v1, 1, 3
    v_xor_b32 v4, v3, v4
    v_lshlrev_b32 v4, 4, v4
    v_lshl_add_u32 v4, v2, 7, v4
    s_lshr_b32 s60, s%d, 1
    s_lshl_b32 s60, s60, 14
    s_add_u32 s60, s60, %d
    v_add_u32 v%d, s60, v4
    """ % (S_WV, g.RA, lds + 32768, g.RA + 1, g.RA, S_WV, lds, g.RB))
    for s in range(1, 4):
        a("v_xor_b32 v%d, %d, v%d" % (g.RB + s, 32 * s, g.RB))
    a("""
    v_and_b32 v2, 15, v1
    v_bfe_u32 v3, v1, 4, 1
    v_cmp_eq_u32 vcc, v2, v3
    v_mov_b32 v4, 0x3f803f80
    v_cndmask_b32 v%d, 0, v4, vcc
    """ % g.SEL)
    for i in range(1, 4):
        a("v_mov_b32 v%d, v%d" % (g.SEL + i, g.SEL))
    for i in range(4):
        a("v_mov_b32 v%d, 0" % (g.CS + i))


def g1_chunk(a, pos_expr):
    g = G1
    a("""
    s_add_u32 s60, s%d, %s
    s_and_b32 s60, s60, 3
    s_and_b32 s61, %s, 4
    s_or_b32 s60, s60, s61
    s_lshl_b32 s%d, s60, 7
    s_mul_i32 s%d, s60, %d
    """ % (g.S_ORD, pos_expr, pos_expr, g.S_KX, g.S_KW, 64 * 3584))


def g1_dma_list(slot_sreg, fl=""):
    g = G1
    L = []
    for h in range(2):
        L.append("s_add_u32 s62, s%d, s%d" % (slot_sreg, g.S_MX))
        L.append("s_add_u32 m0, s62, %d" % (4096 * h))
        for i in range(4):
            L.append("buffer_load_dwordx4 v%d, s[%d:%d], s%d offen offset:%d %s lds" % (g.DX + 4 * h + i, SX, SX + 3, g.S_KX, 1024 * i, fl))
    L.append("s_add_u32 m0, s%d, s%d" % (slot_sreg, g.S_MW))
    for i in range(4):
        L.append("buffer_load_dwordx4 v%d, s[%d:%d], s%d offen offset:%d %s lds" % (g.DW + i, SW, SW + 3, g.S_KW, 1024 * i, fl))
    return L


def g1_reads(s, fs):
    g = G1
    L = []
    f = g.FR + 24 * fs
    for t in range(2):
        for e in range(2):
            L.append("ds_read_b64_tr_b16 %s, v%d offset:%d" % (vr(f + 4 * t + 2 * e, 2), g.RA + t, s * 2048 + e * 512))
    for b in range(4):
        L.append("ds_read_b128 %s, v%d offset:%d" % (vr(f + 8 + 4 * b, 4), g.RB + s, b * 4096))
    return L


def g1_mfmas(fs, first=False):
    g = G1
    f = g.FR + 24 * fs
    L = []
    for b in range(4):
        for t in range(2):
            c = g.ACC + 16 * (2 * b + t)
            L.append("v_mfma_f32_32x32x16_bf16 %s, %s, %s, %s" % (vr(c, 16), vr(f + 4 * t, 4), vr(f + 8 + 4 * b, 4), "0" if first else vr(c, 16)))
    return L


def interleave(a, mf, fill, per_gap):
    fill = list(fill)
    for i, m in enumerate(mf):
        a(m)
        for _ in range(per_gap[i] if i < len(per_gap) else 0):
            if fill:
                a(fill.pop(0))
    for x in fill:
        a(x)


def g1_cs(wr, fs):
    g = G1
    return "v_mfma_f32_16x16x32_bf16 %s, %s, %s, %s" % (vr(g.CS, 4), vr(g.FR + 24 * fs + 4 * wr, 4), vr(g.SEL, 4), vr(g.CS, 4))


def g1_prefetch(a, lds, fl=""):
    g = G1
    a("s_add_u32 s%d, s%d, s%d" % (g.S_ORD, g.S_RB, g.S_FU))
    for st in range(2):
        g1_chunk(a, str(st))
        a("s_mov_b32 s63, %d" % (lds + st * g.STAGE))
        for x in g1_dma_list(63, fl):
            a(x)


def g1_main(a, lds, fl=""):
    g = G1
    for c in range(128):
        a("v_mov_b32 v%d, 0" % (g.ACC + c))
    a("""
    s_mov_b32 s%d, 0
    s_mov_b32 s%d, 0
    s_mov_b32 s74, %d
    s_waitcnt vmcnt(12)
    s_barrier
    """ % (g.S_CNT, g.S_SLOT, g.STAGE))
    stamp(a)
    for x in g1_reads(0, 0):
        a(x)
    g1_chunk(a, "2")
    a("s_mov_b32 s63, %d" % (lds + 2 * g.STAGE))
    for x in g1_dma_list(63, fl):
        a(x)
    a("s_cmp_ge_u32 s%d, 2\ns_cbranch_scc1 L_g1_w1" % S_WV)
    for wr in range(2):
        a("L_g1_w%d:" % wr)
        for s in range(3):
            a("s_waitcnt lgkmcnt(0)")
            mf = g1_mfmas(s & 1)
            mf.insert(5, g1_cs(wr, s & 1))
            interleave(a, mf, g1_reads(s + 1, (s + 1) & 1), [2, 2, 2, 2])
        a("""
        s_add_u32 s%d, s%d, 1
        s_cmp_ge_u32 s%d, 7
        s_cbranch_scc1 L_g1_d%d
        s_waitcnt vmcnt(12) lgkmcnt(0)
        s_branch L_g1_b%d
        L_g1_d%d:
        s_waitcnt vmcnt(0) lgkmcnt(0)
        L_g1_b%d:
        s_barrier
        s_add_u32 s63, s%d, %d
        s_add_u32 s%d, s%d, %d
        s_cmp_eq_u32 s%d, %d
        s_cselect_b32 s%d, 0, s%d
        s_cselect_b32 s62, %d, s74
        """ % (g.S_CNT, g.S_CNT, g.S_CNT, wr, wr, wr, wr, g.S_SLOT, lds, g.S_SLOT, g.S_SLOT, g.STAGE,
               g.S_SLOT, 3 * g.STAGE, g.S_SLOT, g.S_SLOT, -2 * g.STAGE))
        for r in [g.RA, g.RA + 1] + [g.RB + s for s in range(4)]:
            a("v_add_u32 v%d, s62, v%d" % (r, r))
        stamp(a)
        mf = g1_mfmas(1)
        mf.insert(5, g1_cs(wr, 1))
        a("s_cmp_ge_u32 s%d, 6\ns_cbranch_scc1 L_g1_n%d" % (g.S_CNT, wr))
        a("s_add_u32 s61, s%d, 2" % g.S_CNT)
        a("s_mov_b32 s73, s61")
        g1_chunk(a, "s73")
        interleave(a, mf, g1_reads(0, 0) + g1_dma_list(63, fl), [2, 2, 2, 2, 4, 2, 4, 4, 4])
        a("s_branch L_g1_w%d" % wr)
        a("L_g1_n%d:" % wr)
        a("s_cmp_eq_u32 s%d, 8\ns_cbranch_scc1 L_g1_e%d" % (g.S_CNT, wr))
        interleave(a, mf, g1_reads(0, 0), [2, 2, 2, 2])
        a("s_branch L_g1_w%d" % wr)
        a("L_g1_e%d:" % wr)
        for m in mf:
            a(m)
        if wr == 0:
            a("s_branch L_g1_done")
    a("L_g1_done:")


def g1_stats_issue(a, sb, V, fl=""):
    g = G1
    a("""
    s_lshl_b32 s60, s%d, 11
    s_lshr_b32 s61, s%d, 1
    s_lshl_b32 s61, s61, 10
    s_add_u32 s60, s60, s61
    s_add_u32 s60, s60, 0x%x
    v_and_b32 v2, 31, v1
    v_lshlrev_b32 v2, 3, v2
    """ % (g.S_RB, S_WV, WS_STATS))
    for b in range(4):
        sb.vm("buffer_load_dword v%d, v2, s[%d:%d], s60 offen offset:%d %s" % (V + b, SWS, SWS + 3, 256 * b, fl), "m")


def g1_epilogue(a, sb, V, lds, st_flags=""):
    g = G1
    X = g.FR
    a("""
    v_and_b32 v2, 15, v1
    v_lshrrev_b32 v3, 4, v1
    v_lshlrev_b32 v3, 4, v3
    v_lshl_add_u32 v3, v2, 6, v3
    s_and_b32 s60, s%d, 1
    s_lshl_b32 s60, s60, 8
    s_add_u32 s60, s60, %d
    s_lshr_b32 s61, s%d, 1
    s_lshl_b32 s61, s61, 7
    s_add_u32 s61, s61, s60
    v_add_u32 v3, s61, v3
    v_cmp_gt_u32 vcc, 2, v2
    s_and_saveexec_b64 s[62:63], vcc
    ds_write_b128 v3, %s
    s_mov_b64 exec, s[62:63]
    v_and_b32 v2, 31, v1
    v_lshl_add_u32 v2, v2, 2, s60
    s_waitcnt lgkmcnt(0)
    s_barrier
    ds_read_b32 v4, v2
    ds_read_b32 v5, v2 offset:128
    v_cmp_gt_u32 vcc, 32, v1
    """ % (S_WV, lds, S_WV, vr(g.CS, 4)))
    sb.need("vm", "m")
    for b in range(4):
        r = X + 8 + 4 * b
        a("v_xor_b32 v%d, 0x80000000, v%d" % (V + b, V + b))
        a("v_lshrrev_b32 v%d, 16, v%d" % (r + 1, V + b))
        a("v_or_b32 v%d, v%d, v%d" % (r, V + b, r + 1))
        a("v_mov_b32 v%d, 0\nv_mov_b32 v%d, 0" % (r + 2, r + 3))
    a("s_waitcnt lgkmcnt(0)")
    for t in range(2):
        c, r = 4 + t, X + 4 * t
        a("""
        v_cvt_pk_bf16_f32 v6, v%d, v%d
        v_and_b32 v7, 0xffff0000, v6
        v_sub_f32 v%d, v%d, v7
        v_cvt_pk_bf16_f32 v7, v%d, v%d
        v_and_b32 v8, 0xffff0000, v7
        v_sub_f32 v%d, v%d, v8
        v_cvt_pk_bf16_f32 v9, v%d, 0
        v_alignbit_b32 v6, v7, v6, 16
        v_cndmask_b32 v%d, 0, v6, vcc
        v_cndmask_b32 v%d, 0, v9, vcc
        v_mov_b32 v%d, 0
        v_mov_b32 v%d, 0
        """ % (c, c, c, c, c, c, c, c, c, r, r + 1, r + 2, r + 3))
    for m in g1_mfmas(0):
        a(m)
    a("""
    s_lshl_b32 s60, s%d, 3
    s_lshr_b32 s61, s%d, 1
    s_lshl_b32 s61, s61, 2
    s_add_u32 s60, s60, s61
    s_mul_i32 s60, s60, 112
    s_lshl_b32 s61, s%d, 2
    s_add_u32 s60, s60, s61
    s_and_b32 s61, s%d, 1
    s_lshl_b32 s61, s61, 1
    s_add_u32 s60, s60, s61
    s_lshl_b32 s60, s60, 10
    s_add_u32 s60, s60, 0x%x
    v_lshlrev_b32 v2, 4, v1
    """ % (g.S_RB, S_WV, g.S_FU, S_WV, WS_H))
    for b in range(4):
        for t in range(2):
            c = g.ACC + 16 * (2 * b + t)
            o = X + 24 + 4 * ((2 * b + t) & 3)
            for i in range(8):
                a("v_max_f32 v%d, 0, v%d" % (c + i, c + i))
            for i in range(4):
                a("v_pk_mul_f32 %s, %s, %s" % (vr(c + 2 * i, 2), vr(c + 2 * i, 2), vr(c + 8 + 2 * i, 2)))
            for i in range(4):
                a("v_cvt_pk_bf16_f32 v%d, v%d, v%d" % (o + i, c + 2 * i, c + 2 * i + 1))
            sb.vm("buffer_store_dwordx4 %s, v2, s[%d:%d], s60 offen offset:%d %s" % (vr(o, 4), SWS, SWS + 3, 1024 * t, st_flags), "st")
        a("s_add_u32 s60, s60, %d" % (112 * 1024))


S_P = 76
TCOPY = 4160
TCH = 4 * TCOPY
UCH = 4608
IDXC = 2 * (0x4300 - 128)


def cmul(a, d, p, z):
    a("v_pk_mul_f32 %s, %s, %s op_sel_hi:[1,0]" % (vr(d, 2), vr(p, 2), vr(z, 2)))
    a("v_pk_fma_f32 %s, %s, %s, %s op_sel:[1,1,0] op_sel_hi:[0,1,1] neg_lo:[0,1,0]" % (vr(d, 2), vr(p, 2), vr(z, 2), vr(d, 2)))


def cmul_n(a, jobs):
    for d, p, z in jobs:
        a("v_pk_mul_f32 %s, %s, %s op_sel_hi:[1,0]" % (vr(d, 2), vr(p, 2), vr(z, 2)))
    for d, p, z in jobs:
        a("v_pk_fma_f32 %s, %s, %s, %s op_sel:[1,1,0] op_sel_hi:[0,1,1] neg_lo:[0,1,0]" % (vr(d, 2), vr(p, 2), vr(z, 2), vr(d, 2)))


def kg_issue(a, sb, V):
    a("""
    s_lshl_b32 s%d, s%d, 5
    s_add_u32 s%d, s%d, s%d
    s_lshl_b32 s60, s%d, 9
    v_lshl_add_u32 v%d, v0, 1, s60
    s_lshl_b32 s60, s%d, 2
    s_load_dword s77, s[%d:%d], s60
    """ % (S_P, S_XCD, S_P, S_P, S_LOC, S_P, V + 6, S_P, P_LDT, P_LDT + 1))
    for i, p in enumerate((P_ARE, P_AIM, P_BRE, P_BIM, P_CRE, P_CIM)):
        sb.vm("global_load_ushort v%d, v%d, s[%d:%d]" % (V + i, V + 6, p, p + 1), "kp")


def kg_compute(a, sb, V, scr, xch, tab):
    Z1, Z8, Z256, Z16 = V + 8, V + 10, V + 12, V + 14
    AR, CB, T = V + 16, V + 18, V + 20
    PK = V + 32
    FE, FG = V + 64, V + 96
    AD = V + 6
    a("s_waitcnt lgkmcnt(0)")
    a("""
    s_lshr_b32 s60, s%d, 1
    s_lshl_b32 s60, s60, 4
    s_lshr_b32 s60, s77, s60
    s_lshl_b32 s60, s60, 16
    v_mov_b32 v%d, 0x%x
    v_mul_f32 v%d, s60, v%d
    v_exp_f32 v%d, v%d
    v_cvt_pk_bf16_f32 v%d, v%d, v%d
    v_and_b32 v%d, 0xffff0000, v%d
    """ % (S_WV, T, LOG2E, T, T, T, T, T, T, T, T, T))
    sb.need("vm", "kp")
    for i in range(6):
        a("v_lshlrev_b32 v%d, 16, v%d" % (V + i, V + i))
    a("v_pk_mul_f32 %s, %s, %s op_sel_hi:[1,0]" % (vr(AR, 2), vr(V, 2), vr(T, 2)))
    a("v_pk_mul_f32 %s, %s, %s op_sel_hi:[1,0]" % (vr(V + 2, 2), vr(V + 2, 2), vr(T, 2)))
    cmul(a, CB, V + 4, V + 2)
    import math
    zs = ((Z8, 8), (Z1, 1), (Z256, 256))
    for k, (z, l) in enumerate(zs):
        a("v_mul_f32 v%d, 0x%x, v%d" % (T + 2 * k, f2u(l * math.log2(math.e)), AR))
        a("v_mul_f32 v%d, 0x%x, v%d" % (T + 2 * k + 1, f2u(l / (2 * math.pi)), AR + 1))
    for k, (z, l) in enumerate(zs):
        a("v_fract_f32 v%d, v%d" % (T + 2 * k + 1, T + 2 * k + 1))
        a("v_exp_f32 v%d, v%d" % (T + 2 * k, T + 2 * k))
    for k, (z, l) in enumerate(zs):
        a("v_cos_f32 v%d, v%d" % (z, T + 2 * k + 1))
        a("v_sin_f32 v%d, v%d" % (z + 1, T + 2 * k + 1))
    for k, (z, l) in enumerate(zs):
        a("v_pk_mul_f32 %s, %s, %s op_sel_hi:[1,0]" % (vr(z, 2), vr(z, 2), vr(T + 2 * k, 2)))
    cmul(a, Z16, Z8, Z8)
    a("""
    v_bfe_u32 v%d, v1, 1, 1
    v_bfe_u32 v%d, v1, 2, 1
    v_lshlrev_b32 v%d, 6, v%d
    v_lshl_add_u32 v%d, v%d, 5, v%d
    v_and_b32 v%d, 1, v1
    v_lshl_add_u32 v%d, v%d, 4, v%d
    v_lshl_add_u32 v%d, v1, 7, v%d
    s_lshl_b32 s60, s%d, 13
    s_add_u32 s60, s60, %d
    v_add_u32 v%d, s60, v%d
    """ % (T, T + 1, T, T, T, T + 1, T, T + 1, T, T + 1, T, T, T, S_WV, scr, AD, T))
    e0, e1, n0, n1 = T, T + 2, T + 4, T + 6
    a("v_mov_b32 v%d, 1.0\nv_mov_b32 v%d, 0\nv_mov_b32 v%d, v%d\nv_mov_b32 v%d, v%d" % (e0, e0 + 1, e1, Z8, e1 + 1, Z8 + 1))
    for j in range(16):
        if j < 15:
            cmul_n(a, [(n0, e0, Z16), (n1, e1, Z16)])
        a("v_cvt_pk_bf16_f32 v%d, v%d, v%d" % (PK + j, e0, e1))
        a("v_cvt_pk_bf16_f32 v%d, v%d, v%d" % (PK + 16 + j, e0 + 1, e1 + 1))
        e0, e1, n0, n1 = n0, n1, e0, e1
        if j & 3 == 3:
            for p in (j >> 2, 4 + (j >> 2)):
                a("v_xor_b32 v%d, %d, v%d" % (T + 8, 16 * p, AD))
                sb.ds("ds_write_b128 v%d, %s" % (T + 8, vr(PK + 4 * p, 4)), "w")
    RD = V + 0
    a("""
    v_bfe_u32 v%d, v1, 2, 2
    v_lshrrev_b32 v%d, 5, v1
    v_lshl_add_u32 v%d, v%d, 3, v%d
    v_lshlrev_b32 v%d, 7, v%d
    v_bfe_u32 v%d, v1, 3, 1
    v_bfe_u32 v%d, v1, 4, 1
    v_lshlrev_b32 v%d, 2, v%d
    v_lshl_add_u32 v%d, v%d, 1, v%d
    v_bfe_u32 v%d, v1, 1, 1
    v_bfe_u32 v%d, v1, 2, 1
    v_xor_b32 v%d, v%d, v%d
    v_add_u32 v%d, v%d, v%d
    v_lshl_add_u32 v%d, v%d, 4, v%d
    v_and_b32 v%d, 1, v1
    v_lshl_add_u32 v%d, v%d, 3, v%d
    v_add_u32 v%d, s60, v%d
    v_xor_b32 v%d, 32, v%d
    v_xor_b32 v%d, 64, v%d
    v_xor_b32 v%d, 96, v%d
    """ % (T + 8, T + 9, T + 8, T + 9, T + 8, T + 8, T + 8,
           T + 9, T + 10, T + 9, T + 9, T + 9, T + 10, T + 9,
           T + 10, T + 11, T + 10, T + 10, T + 11, T + 9, T + 9, T + 10,
           T + 8, T + 9, T + 8, T + 9, T + 8, T + 9, T + 8, RD, T + 8,
           RD + 1, RD, RD + 2, RD, RD + 3, RD))

    def frag_reads(F, tag):
        for k in range(8):
            for e in range(2):
                sb.ds("ds_read_b64_tr_b16 %s, v%d offset:%d" % (vr(F + 4 * k + 2 * e, 2), RD + 2 * (k >> 2) + e, (k & 3) * 2048 + e * 512), tag)
    sb.need("lgkm", "w")
    frag_reads(FE, "fe")
    G = FG
    g = [FG + 2 * i for i in range(16)] + [T + 2 * i for i in range(5)]
    a("v_mov_b32 v%d, v%d\nv_mov_b32 v%d, v%d" % (g[0], CB, g[0] + 1, CB + 1))
    cmul_n(a, [(g[1], g[0], Z1), (Z16, Z1, Z1), (g[8], g[0], Z256)])
    cmul_n(a, [(g[2], g[0], Z16), (g[3], g[1], Z16), (g[12], g[8], Z256)])
    cmul_n(a, [(g[4], g[2], Z16), (g[5], g[3], Z16), (g[9], g[2], Z256), (g[14], g[12], Z256)])
    cmul_n(a, [(g[6], g[4], Z16), (g[7], g[5], Z16), (g[10], g[4], Z256), (g[16], g[14], Z256)])
    cmul_n(a, [(g[11], g[6], Z256), (g[13], g[10], Z256), (g[17], g[16], Z256)])
    cmul_n(a, [(g[15], g[13], Z256), (g[18], g[17], Z256)])
    cmul(a, g[19], g[18], Z256)
    cmul(a, g[20], g[19], Z256)
    for j in range(11):
        hi = g[2 * j + 1] if j < 10 else g[20]
        a("v_cvt_pk_bf16_f32 v%d, v%d, v%d" % (PK + j, g[2 * j], hi))
        a("v_cvt_pk_bf16_f32 v%d, -v%d, -v%d" % (PK + 16 + j, g[2 * j] + 1, hi + 1))
    sb.need("lgkm", "fe")
    for p in (0, 1, 2, 4, 5, 6):
        a("v_xor_b32 v%d, %d, v%d" % (Z1, 16 * p, AD))
        sb.ds("ds_write_b128 v%d, %s" % (Z1, vr(PK + 4 * p, 4)), "w")
    sb.need("lgkm", "w")
    frag_reads(FG, "fg")
    D = PK
    sb.need("lgkm", "fg")
    for k in range(8):
        a("v_mfma_f32_32x32x16_bf16 %s, %s, %s, %s" % (vr(D, 16), vr(FG + 4 * k, 4), vr(FE + 4 * k, 4), vr(D, 16) if k else "0"))
    a("""
    s_lshr_b32 s60, s%d, 1
    s_mul_i32 s61, s60, 3072
    s_add_u32 s61, s61, %d
    v_lshl_add_u32 v%d, v1, 4, s61
    s_mul_i32 s60, s60, 1536
    s_add_u32 s60, s60, %d
    s_bitcmp1_b32 s%d, 0
    s_cbranch_scc0 L_kg_even
    """ % (S_WV, xch, T, tab, S_WV))
    for i in range(3):
        a("ds_write_b128 v%d, %s offset:%d" % (T, vr(D + 4 * i, 4), 1024 * i))
    a("s_waitcnt lgkmcnt(0)\ns_barrier\ns_branch L_kg_join\nL_kg_even:\ns_barrier")
    for i in range(3):
        a("ds_read_b128 %s, v%d offset:%d" % (vr(FE + 4 * i, 4), T, 1024 * i))
    a("""
    v_and_b32 v%d, 31, v1
    v_lshrrev_b32 v%d, 5, v1
    v_lshlrev_b32 v%d, 3, v%d
    v_lshl_add_u32 v%d, v%d, 4, v%d
    v_add_u32 v%d, s60, v%d
    v_cmp_gt_u32 vcc, 32, v1
    v_lshlrev_b32 v%d, 3, v%d
    v_add_u32 v%d, 512, v%d
    v_lshlrev_b32 v%d, 2, v%d
    v_add_u32 v%d, 768, v%d
    v_cndmask_b32 v%d, v%d, v%d, vcc
    v_add_u32 v%d, s60, v%d
    v_mov_b32 v%d, 128
    v_cndmask_b32 v%d, v%d, 4, vcc
    v_add_u32 v%d, v%d, v%d
    v_lshlrev_b32 v%d, 8, v%d
    v_lshl_add_u32 v%d, v%d, 1, v%d
    v_add_u32 v%d, s60, v%d
    s_waitcnt lgkmcnt(0)
    """ % (T, T + 1, T + 2, T + 1, T + 2, T, T + 2, T + 2, T + 2,
           T + 3, T, T + 3, T + 3, T + 4, T, T + 4, T + 4, T + 3, T + 4, T + 3, T + 3, T + 3,
           T + 4, T + 4, T + 4, T + 4, T + 4, T + 3,
           T + 5, T + 1, T + 5, T, T + 5, T + 5, T + 5))
    for i in range(6):
        a("v_pk_add_f32 %s, %s, %s" % (vr(D + 2 * i, 2), vr(D + 2 * i, 2), vr(FE + 2 * i, 2)))
    for i in range(4):
        a("v_cvt_pk_bf16_f32 v%d, v%d, v%d" % (FE + i, D + 2 * i, D + 2 * i + 1))
    for i in range(4):
        a("v_cvt_pk_bf16_f32 v%d, v%d, v%d" % (FE + 4 + i, D + 8 + i, D + 8 + i))
    a("ds_write_b64 v%d, %s" % (T + 2, vr(FE, 2)))
    a("ds_write_b32 v%d, v%d\nds_write_b32 v%d, v%d" % (T + 3, FE + 2, T + 4, FE + 3))
    for i in range(4):
        a("ds_write_b16 v%d, v%d offset:%d" % (T + 5, FE + 4 + i, 1024 + 64 * i))
    a("s_waitcnt lgkmcnt(0)\nL_kg_join:")


def kg_expand(a, sb, V, tab, tcopies):
    AD, T, U = V, V + 12, V + 24
    D, D2, O, O2 = V + 36, V + 43, V + 48, V + 53
    a("""
    v_lshlrev_b32 v%d, 3, v0
    v_cvt_f32_u32 v%d, v%d
    v_lshlrev_b32 v%d, 4, v0
    v_cmp_gt_u32 vcc, 16, v0
    """ % (T, T, T, U))
    for i in range(1, 12):
        a("v_add_f32 v%d, 0x%x, v%d" % (T + i, f2u(float(i)), T))
    for i in range(6):
        a("v_cvt_pk_bf16_f32 v%d, v%d, v%d" % (T + 2 * i, T + 2 * i, T + 2 * i + 1))
    for i in range(11):
        a("v_lshlrev_b32_sdwa v%d, 1, v%d dst_sel:DWORD dst_unused:UNUSED_PAD src0_sel:DWORD src1_sel:WORD_%d" % (AD + i, T + 2 * (i >> 1), i & 1))
        a("v_add_u32 v%d, %d, v%d" % (T + 1, IDXC + 2 * i, U))
        a("v_cndmask_b32 v%d, v%d, v%d, vcc" % (AD + i, AD + i, T + 1))
    a("v_add_u32 v%d, %d, v%d" % (AD + 11, tcopies + 32, U))
    for ch in range(2):
        for i in range(11):
            sb.ds("ds_read_u16 v%d, v%d offset:%d" % ((T, U)[ch] + i, AD + i, tab - IDXC + 1536 * ch), "g%d" % ch)
    for ch in range(2):
        S = (T, U)[ch]
        sb.need("lgkm", "g%d" % ch)
        for k in range(5):
            a("v_lshl_or_b32 v%d, v%d, 16, v%d" % (D + k, S + 2 * k + 1, S + 2 * k))
        for k in range(1, 5):
            a("v_lshl_or_b32 v%d, v%d, 16, v%d" % (D2 + k, S + 2 * k + 1, S + 2 * k))
        for k in range(4):
            a("v_lshl_or_b32 v%d, v%d, 16, v%d" % (O + k, S + 2 * k + 2, S + 2 * k + 1))
        for k in range(1, 5):
            a("v_lshl_or_b32 v%d, v%d, 16, v%d" % (O2 + k, S + 2 * k + 2, S + 2 * k + 1))
        for phi, r in enumerate((D, O, D2 + 1, O2 + 1)):
            sb.ds("ds_write_b128 v%d, %s offset:%d" % (AD + 11, vr(r, 4), ch * TCH + phi * TCOPY), "w")
        Z = V + 58
        a("v_cmp_eq_u32 vcc, 0, v0\ns_and_saveexec_b64 s[62:63], vcc\ns_cbranch_execz L_kx_%d" % ch)
        a("v_mov_b32 v%d, %d" % (Z + 4, tcopies))
        for i in range(4):
            a("v_mov_b32 v%d, 0" % (Z + i))
        for phi in range(4):
            a("ds_write_b128 v%d, %s offset:%d" % (Z + 4, vr(Z, 4), ch * TCH + phi * TCOPY))
        a("ds_write_b128 v%d, %s offset:%d" % (Z + 4, vr(Z, 4), ch * TCH + 16))
        a("v_lshlrev_b32 v%d, 16, v%d" % (Z + 3, S))
        a("ds_write_b128 v%d, %s offset:%d" % (Z + 4, vr(Z, 4), ch * TCH + TCOPY + 16))
        a("v_mov_b32 v%d, v%d\nv_mov_b32 v%d, v%d" % (Z + 2, Z + 3, Z + 3, O))
        a("ds_write_b128 v%d, %s offset:%d" % (Z + 4, vr(Z, 4), ch * TCH + 3 * TCOPY + 16))
        a("v_mov_b32 v%d, 0\nv_mov_b32 v%d, v%d" % (Z + 2, Z + 3, D))
        a("ds_write_b128 v%d, %s offset:%d" % (Z + 4, vr(Z, 4), ch * TCH + 2 * TCOPY + 16))
        a("s_waitcnt lgkmcnt(0)\nL_kx_%d:\ns_mov_b64 exec, s[62:63]" % ch)


def conv_u_issue(a, sb, V, uimg, fl=""):
    a("""
    v_lshlrev_b32 v%d, 13, v0
    s_lshl_b32 s60, s%d, 5
    s_add_u32 s60, s60, 0x%x
    s_lshl_b32 s61, s%d, 10
    s_add_u32 m0, s61, %d
    """ % (V, S_P, WS_XNB, S_WV, uimg + 512))
    sb.vm("buffer_load_dwordx4 v%d, s[%d:%d], s60 offen %s lds" % (V, SWS, SWS + 3, fl), "u")
    a("s_add_u32 s60, s60, 16\ns_add_u32 m0, s61, %d" % (uimg + UCH + 512))
    sb.vm("buffer_load_dwordx4 v%d, s[%d:%d], s60 offen %s lds" % (V, SWS, SWS + 3, fl), "u")
    a("""
    v_lshrrev_b32 v%d, 7, v0
    v_mul_u32_u24 v%d, %d, v%d
    v_and_b32 v%d, 127, v0
    v_lshl_add_u32 v%d, v%d, 2, v%d
    v_mov_b32 v%d, 0
    """ % (V + 1, V + 1, UCH, V + 1, V + 2, V + 1, V + 2, V + 1, V + 2))
    sb.ds("ds_write_b32 v%d, v%d offset:%d" % (V + 1, V + 2, uimg), "w")


def conv_main(a, sb, V, uimg, tcopies, fill=None):
    ACC, FA, FB, RA, RB = V, V + 32, V + 64, V + 96, V + 97
    a("""
    v_and_b32 v2, 15, v1
    v_lshrrev_b32 v3, 4, v1
    v_add_u32 v4, 1, v2
    v_and_b32 v5, 3, v4
    v_mul_u32_u24 v5, %d, v5
    v_lshrrev_b32 v4, 2, v4
    v_lshl_add_u32 v5, v4, 3, v5
    v_lshl_add_u32 v5, v3, 4, v5
    s_lshr_b32 s60, s%d, 1
    s_and_b32 s61, s%d, 1
    s_lshl_b32 s61, s61, 8
    s_mul_i32 s62, s60, %d
    s_add_u32 s62, s62, s61
    s_add_u32 s62, s62, %d
    v_add_u32 v%d, s62, v5
    v_lshlrev_b32 v4, 5, v2
    v_lshlrev_b32 v3, 4, v3
    v_sub_u32 v4, v4, v3
    s_mul_i32 s62, s60, %d
    s_sub_u32 s62, s62, s61
    s_add_u32 s62, s62, %d
    v_add_u32 v%d, s62, v4
    """ % (TCOPY, S_WV, S_WV, TCH, tcopies, RA, UCH, uimg + 16 * 33 - 192, RB))

    def rd_a(mu, nu):
        for e in range(2):
            sb.ds("ds_read_b64 %s, v%d offset:%d" % (vr(FA + 4 * nu + 2 * e, 2), RA, 64 * mu + 512 * nu + 8 * e), ("a", mu, nu))

    def rd_b(mu, de):
        sb.ds("ds_read_b128 %s, v%d offset:%d" % (vr(FB + 4 * de, 4), RB, 512 * de + 64 * (3 - mu)), ("b", mu, de))
    rd_a(0, 0)
    for de in range(7, -1, -1):
        rd_b(0, de)
    for nu in range(1, 8):
        rd_a(0, nu)
    for mu in range(4):
        for nu in range(8):
            for j in range(7, nu - 1, -1):
                sb.need("lgkm", [("a", mu, nu), ("b", mu, j - nu)])
                c = ACC + 4 * j
                a("v_mfma_f32_16x16x32_bf16 %s, %s, %s, %s" % (vr(c, 4), vr(FA + 4 * nu, 4), vr(FB + 4 * (j - nu), 4),
                                                              "0" if mu == 0 and nu == 0 else vr(c, 4)))
                if mu < 3 and j == 7 and nu > 0:
                    rd_a(mu + 1, nu - 1)
                if mu < 3 and j == 7:
                    rd_b(mu + 1, 7 - nu)
                if fill:
                    fill(mu, nu, j)
            if mu < 3 and nu == 7:
                rd_a(mu + 1, 7)


def conv_out(a, sb, V, red, st_flags=""):
    ACC, T = V, V + 32
    a("s_lshl_b32 s60, s%d, 13\ns_add_u32 m0, s60, %d" % (S_WV, red))
    for r in range(32):
        sb.ds("ds_write_addtid_b32 v%d offset:%d" % (ACC + r, 256 * r), "w")
    a("""
    s_lshl_b32 s60, s%d, 11
    s_add_u32 m0, s60, %d
    s_lshl_b32 s60, s%d, 13
    s_lshl_b32 s61, s%d, 11
    s_add_u32 s60, s60, s61
    s_add_u32 s60, s60, 0x%x
    v_and_b32 v2, 15, v1
    v_lshrrev_b32 v3, 4, v1
    v_lshlrev_b32 v3, 4, v3
    v_lshl_add_u32 v2, v2, 6, v3
    """ % (S_WV, red, S_P, S_WV, WS_Y))
    sb.drain("lgkm")
    a("s_barrier")
    for t in range(2):
        for w in range(4):
            for r in range(4):
                sb.ds("ds_read_addtid_b32 v%d offset:%d" % (T + 16 * t + 4 * w + r, 8192 * w + 1024 * t + 256 * r), "r%d" % t)
    for t in range(2):
        sb.need("lgkm", "r%d" % t)
        b = T + 16 * t
        for h in range(2):
            for c in range(2):
                a("v_pk_add_f32 %s, %s, %s" % (vr(b + 8 * c + 2 * h, 2), vr(b + 8 * c + 2 * h, 2), vr(b + 8 * c + 4 + 2 * h, 2)))
        for r in range(4):
            a("v_cvt_pk_bf16_f32 v%d, v%d, v%d" % (ACC + 4 * t + r, b + r, b + 8 + r))
        sb.vm("buffer_store_dwordx4 %s, v2, s[%d:%d], s60 offen offset:%d %s" % (vr(ACC + 4 * t, 4), SWS, SWS + 3, 1024 * t, st_flags), "st")


S_R, S_CB, S_HO, S_WO = 78, 79, 80, 81
RPITCH = 272
RWAVE = 32 * RPITCH


def g2_setup(a):
    a("""
    s_lshl_b32 s60, s%d, 2
    s_lshr_b32 s61, s%d, 3
    s_add_u32 s%d, s60, s61
    s_and_b32 s%d, s%d, 7
    s_mul_i32 s60, s%d, 28
    s_mul_i32 s61, s%d, 224
    s_add_u32 s61, s61, s60
    s_lshl_b32 s61, s61, 10
    s_add_u32 s%d, s61, 0x%x
    s_mul_i32 s61, s%d, 224
    s_add_u32 s61, s61, s60
    s_lshl_b32 s61, s61, 10
    s_add_u32 s%d, s61, 0x%x
    """ % (S_XCD, S_LOC, S_R, S_CB, S_LOC, S_WV, S_R, S_HO, WS_H, S_CB, S_WO, WS_WDF))


def g2_wd_list(VA, fl=""):
    L = []
    for s in range(0, 28, 4):
        for dt in range(2):
            L.append("s_add_u32 s60, s%d, %d" % (S_WO, (dt * 112 + s) * 1024))
            for i in range(4):
                L.append("buffer_load_dwordx4 %s, v%d, s[%d:%d], s60 offen offset:%d %s" % (ar(8 * (s + i) + 4 * dt, 4), VA, SWS, SWS + 3, 1024 * i, fl))
    return L


def g2_side_issue(a, sb, V, yimg, fl=""):
    a("""
    v_bfe_u32 v2, v1, 3, 1
    v_bfe_u32 v3, v1, 4, 1
    v_lshl_add_u32 v2, v3, 2, v2
    v_lshrrev_b32 v3, 5, v1
    v_lshl_add_u32 v2, v3, 1, v2
    s_lshl_b32 s60, s%d, 6
    s_lshl_b32 s61, s%d, 3
    s_add_u32 s60, s60, s61
    v_add_u32 v3, s60, v2
    v_and_b32 v4, 7, v1
    v_lshlrev_b32 v4, 4, v4
    s_lshl_b32 s60, s%d, 7
    v_add_u32 v4, s60, v4
    v_lshl_add_u32 v%d, v3, 10, v4
    v_lshlrev_b32 v3, 3, v3
    s_mov_b32 s60, 32768
    s_mov_b32 s61, 0x%x
    """ % (S_R, S_WV, S_CB, V + 16, WS_STATS))
    sb.vm("buffer_load_dwordx4 %s, v%d, s[%d:%d], 0 offen" % (vr(V, 4), V + 16, SX, SX + 3), "side")
    sb.vm("buffer_load_dwordx4 %s, v%d, s[%d:%d], s60 offen" % (vr(V + 4, 4), V + 16, SX, SX + 3), "side")
    sb.vm("buffer_load_dwordx2 %s, v3, s[%d:%d], s61 offen %s" % (vr(V + 8, 2), SWS, SWS + 3, fl), "side")
    sb.vm("buffer_load_dwordx2 %s, v3, s[%d:%d], s61 offen offset:256 %s" % (vr(V + 10, 2), SWS, SWS + 3, fl), "side")
    sb.vm("global_load_dwordx4 %s, v4, s[%d:%d]" % (vr(V + 12, 4), P_DSK, P_DSK + 1), "side")
    a("""
    v_and_b32 v3, 3, v2
    s_lshl_b32 s60, s%d, 2
    v_add_u32 v3, s60, v3
    v_bfe_u32 v4, v1, 2, 1
    v_lshl_add_u32 v3, v4, 4, v3
    v_mul_u32_u24 v3, %d, v3
    v_lshrrev_b32 v4, 2, v2
    v_lshl_add_u32 v3, v4, 7, v3
    v_and_b32 v4, 3, v1
    v_lshl_add_u32 v%d, v4, 5, v3
    s_lshl_b32 s60, s%d, 1
    v_lshrrev_b32 v3, 2, v2
    v_add_u32 v3, s60, v3
    v_and_b32 v4, 7, v1
    v_xor_b32 v3, v3, v4
    v_lshlrev_b32 v3, 4, v3
    v_lshl_add_u32 v3, v4, 10, v3
    v_and_b32 v4, 3, v2
    v_lshl_add_u32 v3, v4, 2, v3
    v_add_u32 v%d, %d, v3
    """ % (S_WV, RPITCH, V + 17, S_WV, V + 18, yimg))


def g2_y_issue(a, sb, yimg, fl=""):
    a("""
    v_lshrrev_b32 v2, 4, v1
    v_and_b32 v3, 15, v1
    s_lshl_b32 s60, s%d, 1
    v_xor_b32 v3, s60, v3
    v_lshlrev_b32 v3, 4, v3
    v_lshl_add_u32 v2, v2, 13, v3
    v_xor_b32 v3, 16, v2
    s_lshl_b32 s60, s%d, 18
    s_lshl_b32 s61, s%d, 16
    s_add_u32 s60, s60, s61
    s_lshl_b32 s61, s%d, 8
    s_add_u32 s60, s60, s61
    s_add_u32 s60, s60, 0x%x
    s_lshl_b32 s61, s%d, 11
    s_add_u32 m0, s61, %d
    """ % (S_WV, S_CB, S_WV, S_R, WS_Y, S_WV, yimg))
    sb.vm("buffer_load_dwordx4 v2, s[%d:%d], s60 offen %s lds" % (SWS, SWS + 3, fl), "y")
    a("s_add_u32 s60, s60, 32768\ns_add_u32 m0, s61, %d" % (yimg + 1024))
    sb.vm("buffer_load_dwordx4 v3, s[%d:%d], s60 offen %s lds" % (SWS, SWS + 3, fl), "y")


def g2_base(a, sb, V, tb, B):
    X, Y, Dk = B + 8, B + 16, B + 24
    for i in range(4):
        sb.ds("ds_read_b32 v%d, v%d offset:%d" % (Dk + i, V + 18, 256 * i + 128 * tb), "yr")
    unpack(a, X, V + 4 * tb, 4)
    unpack(a, B, V + 12, 4)
    st = V + 8 + 2 * tb
    for j in range(4):
        a("v_pk_mul_f32 %s, %s, %s op_sel:[0,1]" % (vr(B + 2 * j, 2), vr(B + 2 * j, 2), vr(st, 2)))
    sb.need("lgkm", "yr")
    unpack(a, Y, Dk, 4)
    for j in range(4):
        a("v_pk_add_f32 %s, %s, %s" % (vr(Y + 2 * j, 2), vr(Y + 2 * j, 2), vr(X + 2 * j, 2)))
        a("v_pk_add_f32 %s, %s, %s op_sel_hi:[1,0] neg_lo:[0,1] neg_hi:[0,1]" % (vr(X + 2 * j, 2), vr(X + 2 * j, 2), vr(st, 2)))
    for j in range(4):
        a("v_pk_fma_f32 %s, %s, %s, %s" % (vr(B + 2 * j, 2), vr(B + 2 * j, 2), vr(X + 2 * j, 2), vr(Y + 2 * j, 2)))
    a("v_mul_f32 v%d, v%d, v%d" % (st + 1, st + 1, st + 1))


def g2_put(a, sb, ACC, red):
    a("s_mul_i32 s60, s%d, %d\ns_add_u32 m0, s60, %d" % (S_WV, RWAVE, red))
    for r in range(32):
        sb.ds("ds_write_addtid_b32 v%d offset:%d" % (ACC + r, RPITCH * r), "w")


def g2_finish(a, sb, V, tb, B, T, red):
    for q in range(4):
        for h in range(2):
            sb.ds("ds_read_b128 %s, v%d offset:%d" % (vr(T + 8 * q + 4 * h, 4), V + 17, red + RWAVE * q + 16 * h), "p%d" % (q >> 1))
    for q in (0, 2):
        sb.need("lgkm", "p%d" % (q >> 1))
        for j in range(4):
            a("v_pk_add_f32 %s, %s, %s" % (vr(T + 8 * q + 2 * j, 2), vr(T + 8 * q + 2 * j, 2), vr(T + 8 * q + 8 + 2 * j, 2)))
    for j in range(4):
        a("v_pk_add_f32 %s, %s, %s" % (vr(T + 2 * j, 2), vr(T + 2 * j, 2), vr(T + 16 + 2 * j, 2)))
    for j in range(4):
        a("v_pk_fma_f32 %s, %s, %s, %s op_sel:[0,1,0]" % (vr(T + 2 * j, 2), vr(T + 2 * j, 2), vr(V + 8 + 2 * tb, 2), vr(B + 2 * j, 2)))
    for j in range(4):
        a("v_cvt_pk_bf16_f32 v%d, v%d, v%d" % (T + 8 + j, T + 2 * j, T + 2 * j + 1))
    a("s_mov_b32 s60, %d" % (32768 * tb))
    sb.vm("buffer_store_dwordx4 %s, v%d, s[%d:%d], s60 offen" % (vr(T + 8, 4), V + 16, SO, SO + 3), "st")


WS_STAMP = 0xE00000
STAMPS = {"on": False, "n": 0}


def stamp(a):
    if not STAMPS["on"]:
        return
    a("s_memtime s[98:99]\ns_waitcnt lgkmcnt(0)\ns_lshl_b64 exec, 1, s100\nv_mov_b32 v%d, s98\ns_mov_b64 exec, -1\ns_add_u32 s100, s100, 1" % STAMPS["reg"])


def stamp_init(a, reg):
    if not STAMPS["on"]:
        return
    STAMPS["reg"] = reg
    a("s_mov_b32 s100, 1\ns_memrealtime s[98:99]\ns_waitcnt lgkmcnt(0)\nv_mov_b32 v%d, 0\nv_writelane_b32 v%d, s98, 0" % (reg, reg))
    stamp(a)


def stamp_flush(a, base=0):
    if not STAMPS["on"]:
        return
    a("s_waitcnt vmcnt(0)")
    stamp(a)
    a("""
    s_lshl_b32 s60, s2, 10
    s_add_u32 s60, s60, 0x%x
    v_lshlrev_b32 v2, 2, v0
    buffer_store_dword v%d, v2, s[%d:%d], s60 offen
    """ % (WS_STAMP + base, STAMPS["reg"], SWS, SWS + 3))
```

```python
import math
import sys
from contextlib import contextmanager
from asmlib import *
import parts as P
from parts import (NAME, P_U, P_ARE, P_AIM, P_BRE, P_BIM, P_CRE, P_CIM, P_LDT, P_DSK, P_WG, P_WU, P_WD, P_OUT, P_WS,
                   SX, SW, SWS, SO, S_WV, S_XCD, S_LOC, LOG2E, f2u, srd, unpack, wave_allsum, TCOPY, TCH, UCH, IDXC)

OPT = dict(stamps=False)

WS_LNF, WS_WF, WS_HF, WS_YF = 0x1000, 0x2000, 0x8000, 0x28000
WS_STATS, WS_XNB, WS_Y, WS_WDF, WS_H = 0x80000, 0x100000, 0x300000, 0x500000, 0x700000
WS_STAMP = 0xE00000
XS, WSL, EXT = (0, 32768, 131072), (81920, 98304, 114688), 65536
L_TC = 114688
L_UI = L_TC + 2 * TCH
L_FLG = L_UI + 2 * UCH
L_CS = (L_FLG + 64 + 1023) & ~1023
RPITCH = 272
RWAVE = 32 * RPITCH
L_CRED, L_H1, L_G0, L_G1, L_YI, L_H0 = 0, 0, 4 * RWAVE, 8 * RWAVE, 12 * RWAVE, 114688
assert L_CS + 1024 <= 163840 and L_YI + 8192 <= L_TC and L_H0 + 4 * RWAVE <= L_FLG
S_W8, S_RB, S_FU, S_KX, S_KW, S_ORD, S_TAG, S_LN, S_P, S_LDT = 59, 64, 65, 66, 67, 68, 69, 70, 71, 72
S_R, S_CB, S_HO, S_CNT = 73, 74, 75, 76
S_M0 = 80
S_GRP = 89
V_STAMP = 7
SPIN = 1 << 18


class Rec:
    def __init__(self):
        self.items, self.cur = [], None

    def _add(self, op):
        (self.cur if self.cur is not None else self.items).append(op if self.cur is not None else [op])

    def __call__(self, text):
        for ln in text.split("\n"):
            ln = ln.strip()
            if ln and not ln.startswith(";"):
                self._add(("a", ln))

    def vm(self, text, tag=None): self._add(("vm", text, tag))
    def ds(self, text, tag=None): self._add(("ds", text, tag))
    def need(self, kind, tags): self._add(("need", kind, tags))
    def drain(self, *kinds): self._add(("drain", kinds))

    @contextmanager
    def group(self):
        self.cur = []
        yield
        self.items.append(self.cur)
        self.cur = None


def play(a, sb, items):
    for g in items:
        for op in g:
            if op[0] == "a": a(op[1])
            elif op[0] == "vm": sb.vm(op[1], op[2])
            elif op[0] == "ds": sb.ds(op[1], op[2])
            elif op[0] == "need": sb.need(op[1], op[2])
            else: sb.drain(*op[1])


def weave(main, side, lead=0, span=1.0):
    out, n, k = list(main[:lead]), len(main) - lead, 0
    for i, g in enumerate(main[lead:]):
        while k < len(side) and k * n * span <= i * len(side):
            out.append(side[k]); k += 1
        out.append(g)
    return out + list(side[k:])


def stamp(a):
    if OPT["stamps"]:
        a("s_memtime s[98:99]\ns_waitcnt lgkmcnt(0)\ns_lshl_b64 exec, 1, s100\nv_mov_b32 v%d, s98\ns_mov_b64 exec, -1\ns_add_u32 s100, s100, 1" % V_STAMP)


def stamp_init(a):
    if OPT["stamps"]:
        a("s_mov_b32 s100, 1\ns_memrealtime s[98:99]\ns_waitcnt lgkmcnt(0)\nv_mov_b32 v%d, 0\nv_writelane_b32 v%d, s98, 0" % (V_STAMP, V_STAMP))
        stamp(a)


def stamp_flush(a):
    if OPT["stamps"]:
        a("s_waitcnt vmcnt(0)")
        stamp(a)
        a("""
        s_lshl_b32 s60, s2, 11
        s_lshl_b32 s61, s%d, 8
        s_add_u32 s60, s60, s61
        s_add_u32 s60, s60, 0x%x
        v_lshlrev_b32 v2, 2, v1
        buffer_store_dword v%d, v2, s[%d:%d], s60 offen
        """ % (S_W8, WS_STAMP, V_STAMP, SWS, SWS + 3))


def descriptors(a):
    a("s_load_dword s%d, s[%d:%d], 0" % (S_TAG, P_WS, P_WS + 1))
    srd(a, SX, P_U, 2048 * 512 * 2)
    srd(a, SWS, P_WS, 0x1000000)


def make_tag(a):
    a("s_waitcnt lgkmcnt(0)\ns_mul_i32 s%d, s%d, 0x9e3779b1\ns_add_u32 s%d, s%d, 0x7f4a7c15" % (S_TAG, S_TAG, S_TAG, S_TAG))


def post(r, vtag, soff):
    with r.group():
        r("s_mov_b64 exec, 1")
        r.vm("buffer_store_dword v%d, off, s[%d:%d], s%d sc1" % (vtag, SWS, SWS + 3, soff), "flag")
        r("s_mov_b64 exec, -1")


def spin(a, label, loads, regs):
    a("s_mov_b32 s%d, %d" % (S_CNT, SPIN))
    a("%s:" % label)
    a("v_cmp_ne_u32 vcc, s%d, v%d" % (S_TAG, regs[0]))
    for r in regs[1:]:
        a("v_cmp_ne_u32 s[62:63], s%d, v%d\ns_or_b64 vcc, vcc, s[62:63]" % (S_TAG, r))
    a("s_cbranch_vccz %s_ok" % label)
    for x in loads:
        a(x)
    a("s_sub_u32 s%d, s%d, 1\ns_waitcnt vmcnt(0)\ns_cbranch_scc0 %s\n%s_ok:" % (S_CNT, S_CNT, label, label))


def lds_wait(a, label, vaddr, T, groups):
    a("%s:" % label)
    for i, g in enumerate(groups):
        a("ds_read_b128 %s, v%d offset:%d" % (vr(T + 4 * i, 4), vaddr, 16 * g))
    a("s_waitcnt lgkmcnt(0)")
    for i in range(1, 4 * len(groups)):
        a("v_and_b32 v%d, v%d, v%d" % (T, T, T + i))
    a("v_cmp_eq_u32 vcc, 0, v%d\ns_cbranch_vccnz %s" % (T, label))


def roles(a):
    a("""
    s_and_b32 s60, s%d, 1
    s_lshl_b32 s60, s60, 2
    s_and_b32 s61, s%d, 3
    s_add_u32 s%d, s60, s61
    s_lshr_b32 s60, s%d, 1
    s_mul_i32 s60, s60, 7
    s_lshr_b32 s61, s%d, 2
    s_add_u32 s%d, s60, s61
    """ % (S_XCD, S_LOC, S_RB, S_XCD, S_LOC, S_FU))


def ln_block(a):
    a("""
    s_and_b32 s60, s%d, 1
    s_lshl_b32 s60, s60, 7
    s_lshr_b32 s61, s%d, 1
    s_lshl_b32 s61, s61, 5
    s_add_u32 s60, s60, s61
    s_add_u32 s%d, s60, s%d
    """ % (S_XCD, S_XCD, S_LN, S_LOC))


RA, RB, RB2, SEL, CS = 10, 12, 16, 20, 24
MB, MA = 28, 40
SETS, FA7 = (48, 72), 96
ACC = 128
VHS = 38


def ln_part1(a, sb, V):
    F, T, S, D = (V + 10, V + 18), V + 26, (V + 34, V + 36), V + 38
    for i in range(2):
        unpack(a, F[i], V + 4 * i, 4)
    for i in range(2):
        f, t = F[i], T + 4 * i
        a("v_pk_add_f32 %s, %s, %s" % (vr(t, 2), vr(f, 2), vr(f + 2, 2)))
        a("v_pk_add_f32 %s, %s, %s" % (vr(t + 2, 2), vr(f + 4, 2), vr(f + 6, 2)))
    for i in range(2):
        t = T + 4 * i
        a("v_pk_add_f32 %s, %s, %s" % (vr(t, 2), vr(t, 2), vr(t + 2, 2)))
    for i in range(2):
        a("v_add_f32 v%d, v%d, v%d" % (S[i], T + 4 * i, T + 4 * i + 1))
    wave_allsum(a, [S[0], S[1]], [T, T + 1])
    for i in range(2):
        a("v_mul_f32 v%d, 0x%x, v%d" % (S[i], f2u(1.0 / 512), S[i]))
    for i in range(2):
        for j in range(4):
            a("v_pk_add_f32 %s, %s, %s op_sel_hi:[1,0] neg_lo:[0,1] neg_hi:[0,1]" % (vr(D + 2 * j, 2), vr(F[i] + 2 * j, 2), vr(S[i], 2)))
        t = T + 4 * i
        a("v_pk_mul_f32 %s, %s, %s" % (vr(t, 2), vr(D, 2), vr(D, 2)))
        a("v_pk_mul_f32 %s, %s, %s" % (vr(t + 2, 2), vr(D + 2, 2), vr(D + 2, 2)))
        a("v_pk_fma_f32 %s, %s, %s, %s" % (vr(t, 2), vr(D + 4, 2), vr(D + 4, 2), vr(t, 2)))
        a("v_pk_fma_f32 %s, %s, %s, %s" % (vr(t + 2, 2), vr(D + 6, 2), vr(D + 6, 2), vr(t + 2, 2)))
        a("v_pk_add_f32 %s, %s, %s" % (vr(t, 2), vr(t, 2), vr(t + 2, 2)))
        a("v_add_f32 v%d, v%d, v%d" % (S[i] + 1, t, t + 1))
    wave_allsum(a, [S[0] + 1, S[1] + 1], [T, T + 1])
    for i in range(2):
        a("v_mul_f32 v%d, 0x%x, v%d" % (S[i] + 1, f2u(1.0 / 512), S[i] + 1))
    for i in range(2):
        a("v_cvt_pk_bf16_f32 v%d, v%d, v%d" % (T + i, S[i], S[i] + 1))
    for i in range(2):
        a("v_lshlrev_b32 v%d, 16, v%d" % (S[i], T + i))
        a("v_and_b32 v%d, 0xffff0000, v%d" % (S[i] + 1, T + i))
    for i in range(2):
        a("v_add_f32 v%d, 0x%x, v%d" % (S[i] + 1, f2u(1e-5), S[i] + 1))
    a("v_cvt_pk_bf16_f32 v%d, v%d, v%d" % (T, S[0] + 1, S[1] + 1))
    a("v_lshlrev_b32 v%d, 16, v%d" % (T + 1, T))
    a("v_and_b32 v%d, 0xffff0000, v%d" % (T + 2, T))
    a("v_sqrt_f32 v%d, v%d" % (T + 1, T + 1))
    a("v_sqrt_f32 v%d, v%d" % (T + 2, T + 2))
    a("v_cvt_pk_bf16_f32 v%d, v%d, v%d" % (T, T + 1, T + 2))
    a("v_lshlrev_b32 v%d, 16, v%d" % (T + 1, T))
    a("v_and_b32 v%d, 0xffff0000, v%d" % (T + 2, T))
    a("v_rcp_f32 v%d, v%d" % (S[0] + 1, T + 1))
    a("v_rcp_f32 v%d, v%d" % (S[1] + 1, T + 2))
    for i in range(2):
        a("v_cvt_pk_bf16_f32 v%d, v%d, v%d" % (T + 4 + 2 * i, S[i], S[i]))
        a("v_mov_b32 v%d, v%d" % (T + 5 + 2 * i, S[i] + 1))
    a("""
    s_lshl_b32 s60, s%d, 6
    s_lshl_b32 s61, s%d, 4
    s_add_u32 s60, s60, s61
    s_add_u32 s60, s60, 0x%x
    s_mov_b64 exec, 1
    """ % (S_LN, S_WV, WS_STATS))
    sb.vm("buffer_store_dwordx4 %s, off, s[%d:%d], s60 sc1" % (vr(T + 4, 4), SWS, SWS + 3), "st")
    a("s_mov_b64 exec, -1")
    a("s_mul_i32 s60, s%d, %d" % (S_WV, -2 * 1088))
    a("s_add_u32 s60, s60, %d" % (EXT + 6 * 1088))
    a("v_add_u32 v%d, s60, v%d" % (V + 9, V + 8))
    for i in range(2):
        for j in range(4):
            a("v_pk_add_f32 %s, %s, %s op_sel_hi:[1,0] neg_lo:[0,1] neg_hi:[0,1]" % (vr(D + 2 * j, 2), vr(F[i] + 2 * j, 2), vr(S[i], 2)))
        for j in range(4):
            a("v_cvt_pk_bf16_f32 v%d, v%d, v%d" % (T + j, D + 2 * j, D + 2 * j + 1))
        unpack(a, D, T, 4)
        for j in range(4):
            a("v_pk_mul_f32 %s, %s, %s op_sel:[0,1]" % (vr(D + 2 * j, 2), vr(D + 2 * j, 2), vr(S[i], 2)))
        for j in range(4):
            a("v_cvt_pk_bf16_f32 v%d, v%d, v%d" % (V + 4 * i + j, D + 2 * j, D + 2 * j + 1))
        sb.ds("ds_write_b128 v%d, %s offset:%d" % (V + 9, vr(V + 4 * i, 4), (1 - i) * 1088), "w")


def ln_part2(VA, VO, D):
    rd = [("ds", "ds_read_b64_tr_b16 %s, v%d offset:%d" % (vr(D + 4 * i + 2 * e, 2), VA, e * 4 * 1088 + i * 128), "ln")
          for i in range(2) for e in range(2)]
    st = [("vm", "buffer_store_dwordx4 %s, v%d, s[%d:%d], s61 offen offset:%d sc1" % (vr(D + 4 * i, 4), VO, SWS, SWS + 3, i * 1024), "st")
          for i in range(2)]
    return rd, st


def g_addresses(a):
    a("""
    v_bfe_u32 v2, v1, 4, 1
    v_lshrrev_b32 v3, 5, v1
    v_bfe_u32 v4, v1, 2, 2
    v_lshl_add_u32 v5, v3, 3, v4
    v_lshlrev_b32 v5, 7, v5
    v_lshl_add_u32 v5, v2, 13, v5
    v_lshrrev_b32 v6, 1, v4
    v_lshl_add_u32 v6, v2, 1, v6
    s_and_b32 s60, s%d, 1
    s_lshl_b32 s60, s60, 1
    s_lshr_b32 s61, s%d, 1
    s_or_b32 s60, s60, s61
    v_xor_b32 v6, s60, v6
    v_lshl_add_u32 v5, v6, 5, v5
    v_and_b32 v6, 3, v1
    v_lshl_add_u32 v5, v6, 3, v5
    v_add_u32 v%d, %d, v5
    v_xor_b32 v%d, 32, v%d
    v_mul_u32_u24 v4, 1088, v4
    v_lshl_add_u32 v4, v6, 3, v4
    v_lshrrev_b32 v6, 4, v1
    v_lshl_add_u32 v4, v6, 5, v4
    s_lshl_b32 s60, s%d, 8
    s_add_u32 s60, s60, %d
    v_add_u32 v9, s60, v4
    v_and_b32 v5, 31, v1
    v_bfe_u32 v4, v1, 1, 3
    v_xor_b32 v4, v3, v4
    v_lshlrev_b32 v4, 4, v4
    v_lshl_add_u32 v4, v5, 7, v4
    s_lshl_b32 s60, s61, 14
    v_add_u32 v%d, s60, v4
    """ % (S_WV, S_WV, RA, WSL[0], RA + 1, RA, S_WV, EXT, RB))
    for s in range(1, 4):
        a("v_xor_b32 v%d, %d, v%d" % (RB + s, 32 * s, RB))
    for s in range(4):
        a("v_add_u32 v%d, %d, v%d" % (RB2 + s, XS[2], RB + s))
    a("""
    v_bfe_u32 v4, v1, 2, 1
    v_cmp_eq_u32 vcc, v2, v4
    v_mov_b32 v4, 0x3f803f80
    v_cndmask_b32 v%d, 0, v4, vcc
    s_lshl_b32 s60, s61, 10
    v_add_u32 v%d, s60, v8
    v_xor_b32 v%d, 0x400, v%d
    """ % (SEL, VHS, VHS + 1, VHS))
    for i in range(1, 4):
        a("v_mov_b32 v%d, v%d" % (SEL + i, SEL))
    for r in (MB + 1, MB + 3, MB + 5, MB + 7, MB + 8, MB + 9, MA + 1, MA + 2, MA + 3, MA + 5, MA + 6, MA + 7):
        a("v_mov_b32 v%d, 0" % r)


def rd_a(stage, s, dst, tag):
    return [("ds", "ds_read_b64_tr_b16 %s, v%d offset:%d" % (vr(dst + 4 * t + 2 * e, 2), RA + t, (stage % 3) * 16384 + s * 2048 + e * 512), tag)
            for t in range(2) for e in range(2)]


def rd_b(stage, s, b, dst, tag):
    slot = stage % 3
    return ("ds", "ds_read_b128 %s, v%d offset:%d" % (vr(dst, 4), (RB2 if slot == 2 else RB) + s, (slot & 1) * 32768 + b * 4096), tag)


def mm(b, t, fa, fb, first=False):
    c = ACC + 16 * (2 * b + t)
    return "v_mfma_f32_32x32x16_bf16 %s, %s, %s, %s" % (vr(c, 16), vr(fa, 4), vr(fb, 4), "0" if first else vr(c, 16))


def side(fa, first=False):
    return "v_mfma_f32_16x16x32_bf16 %s, %s, %s, %s" % (vr(CS, 4), vr(SEL, 4), vr(fa, 4), "0" if first else vr(CS, 4))


def gaps(a, sb, seq, fill, cap):
    fill, i = list(fill), 0
    for x in seq:
        if isinstance(x, tuple):
            play(a, sb, [[x]])
            continue
        a(x)
        n = cap[i] if i < len(cap) else 0
        i += 1
        while n > 0 and fill:
            op = fill.pop(0)
            play(a, sb, [[op]])
            n -= op[0] != "need"
    return fill


def ops(text):
    return [("a", x.strip()) for x in text.strip().split("\n")]


def h_tile(b, t):
    c = ACC + 16 * (2 * b + t)
    L = [("a", "v_max_f32 v%d, 0, v%d" % (c + i, c + i)) for i in range(8)]
    L += [("a", "v_mul_f32 v%d, v%d, v%d" % (c + i, c + i, c + 8 + i)) for i in range(8)]
    L += [("a", "v_cvt_pk_bf16_f32 v%d, v%d, v%d" % (c + i, c + 2 * i, c + 2 * i + 1)) for i in range(4)]
    L += [("vm", "buffer_store_dwordx4 %s, v%d, s[%d:%d], s%d offen sc1" % (vr(c, 4), VHS + t, SWS, SWS + 3, S_HO), "st")]
    if t:
        L += [("a", "s_add_u32 s%d, s%d, %d" % (S_HO, S_HO, 112 * 1024))]
    return L


def g_main(a, sb, ln_rd, ln_st):
    X, Y = SETS
    play(a, sb, [rd_a(0, 0, X, "f") + [rd_b(0, 0, b, X + 8 + 4 * b, "f") for b in range(4)] + ln_rd])
    for st in range(7):
        for s in range(4):
            f, g = SETS[s & 1], SETS[(s + 1) & 1]
            sb.need("lgkm", "f")
            extra = []
            if s == 3:
                if st == 1:
                    sb.drain("vm")
                a("s_barrier")
                stamp(a)
                if st == 5:
                    extra = [("a", "v_and_b32 v2, 31, v1"), ("a", "v_lshlrev_b32 v2, 3, v2")]
                    extra += [("vm", "buffer_load_dword v%d, v2, s[%d:%d], s63 offen offset:%d sc1" % (MB + 2 * b, SWS, SWS + 3, 256 * b), "m") for b in range(4)]
            if (st, s) == (0, 1):
                extra = [("need", "lgkm", "ln")] + ln_st + ops("""
                s_lshl_b32 s60, s%d, 11
                s_lshr_b32 s61, s%d, 1
                s_lshl_b32 s62, s61, 10
                s_add_u32 s60, s60, s62
                s_add_u32 s63, s60, 0x%x
                s_lshl_b32 s60, s%d, 3
                s_lshl_b32 s61, s61, 2
                s_add_u32 s60, s60, s61
                s_mul_i32 s60, s60, 112""" % (S_RB, S_WV, WS_STATS, S_RB))
            if (st, s) == (0, 2):
                extra = ops("""
                s_lshl_b32 s61, s%d, 2
                s_add_u32 s60, s60, s61
                s_and_b32 s61, s%d, 1
                s_lshl_b32 s61, s61, 1
                s_add_u32 s60, s60, s61
                s_lshl_b32 s60, s60, 10
                s_add_u32 s%d, s60, 0x%x
                s_lshl_b32 s60, s%d, 8
                s_add_u32 s60, s60, %d
                v_lshl_add_u32 v9, v1, 2, s60
                v_xor_b32 v6, 0x200, v9""" % (S_FU, S_WV, S_HO, WS_H, S_WV, L_CS))
            first = st == 0 and s == 0
            mf = [mm(b, t, f + 4 * t, f + 8 + 4 * b, first) for b in range(4) for t in range(2)]
            mf.insert(5, side(f, first))
            if (st, s) == (6, 3):
                nxt = [x for q in range(4) for x in rd_a(7, q, FA7 + 8 * q, ("a", q))]
                nxt += [rd_b(7, q, 0, X + 4 * q, ("b", 0, q)) for q in range(4)]
                left = gaps(a, sb, mf, nxt, [3, 3, 3, 3, 2, 0, 2, 2, 2])
            else:
                ns, nq = (st, s + 1) if s < 3 else (st + 1, 0)
                nxt = rd_a(ns, nq, g, "f") + [rd_b(ns, nq, b, g + 8 + 4 * b, "f") for b in range(4)]
                left = gaps(a, sb, mf, nxt + extra, [2, 2, 2, 2, 4, 0, 4, 4, 4])
            assert not left, (st, s, left)
    fb = lambda b: (X, Y)[b & 1]
    seq = []
    for q in range(4):
        seq += [("need", "lgkm", [("a", q)]), side(FA7 + 8 * q)]
    main = lambda b: [x for q in range(4) for x in (("need", "lgkm", [("b", b, q)]), mm(b, 0, FA7 + 8 * q, fb(b) + 4 * q), mm(b, 1, FA7 + 8 * q + 4, fb(b) + 4 * q))]
    mean = lambda b: [mm(b, 0, MA, MB + 2 * b), mm(b, 1, MA + 4, MB + 2 * b)]
    nb = lambda b: [rd_b(7, q, b, fb(b) + 4 * q, ("b", b, q)) for q in range(4)]

    def split(c, dst):
        return ops("""
        v_cvt_pk_bf16_f32 v2, -v%d, -v%d
        v_and_b32 v3, 0xffff0000, v2
        v_add_f32 v5, v%d, v3
        v_cvt_pk_bf16_f32 v3, -v5, -v5
        v_and_b32 v4, 0xffff0000, v3
        v_add_f32 v5, v5, v4
        v_cvt_pk_bf16_f32 v4, -v5, 0
        v_alignbit_b32 v2, v3, v2, 16
        v_cndmask_b32 v%d, v4, v2, vcc""" % (c, c, c, dst))
    fill = nb(1) + [("a", "v_cmp_gt_u32 vcc, 32, v1"), ("ds", "ds_write_b32 v9, v%d" % CS, "cw")] + split(CS, MA)
    fill += [("need", "lgkm", "cw"), ("a", "s_barrier"), ("ds", "ds_read_b32 v%d, v6" % (CS + 1), "cr")]
    left = gaps(a, sb, seq + main(0), fill, [0, 0, 0, 0, 2, 2, 2, 4, 4, 1, 2, 0])
    assert not left, left
    stamp(a)
    m1 = main(1)
    fill = [("need", "lgkm", "cr")] + split(CS + 1, MA + 4) + nb(2) + h_tile(0, 0) + h_tile(0, 1)
    left = gaps(a, sb, m1[:6] + [("need", "vm", "m")] + mean(0) + m1[6:] + mean(1), fill, [0, 5, 4, 0, 2, 2, 0, 0, 5, 5, 5, 5])
    left = gaps(a, sb, main(2) + mean(2), nb(3) + left + h_tile(1, 0) + h_tile(1, 1), [5] * 10)
    sb.need("lgkm", [("b", 3, 3)])
    a("s_barrier")
    stamp(a)
    left = gaps(a, sb, main(3) + mean(3), left + h_tile(2, 0) + h_tile(2, 1), [5] * 10)
    play(a, sb, [left + h_tile(3, 0) + h_tile(3, 1)])


def spare_issue(a):
    srd(a, SW, P_WD, 1792 * 512 * 2)
    a("""
    s_lshl_b32 s60, s%d, 2
    s_add_u32 s60, s60, s%d
    s_sub_u32 s%d, s60, 28
    s_cmp_ge_u32 s%d, 28
    s_cselect_b32 s%d, 0, s%d
    s_lshl_b32 s60, s%d, 16
    s_lshl_b32 s61, s%d, 14
    s_add_u32 s60, s60, s61
    s_mul_i32 s77, s%d, %d
    s_cmp_eq_u32 s%d, 3
    s_cselect_b32 s77, %d, s77
    """ % (S_XCD, S_LOC, S_FU, S_FU, SW + 2, SW + 2, S_FU, S_WV, S_WV, 16 * 1088, S_WV, WSL[0]))
    for i in range(16):
        a("s_add_u32 m0, s77, %d" % (i * 1088))
        a("s_add_u32 s61, s60, %d" % (i * 1024))
        a("buffer_load_dwordx4 v8, s[%d:%d], s61 offen lds" % (SW, SW + 3))


def spare_job(a, ln_rd, ln_st):
    sb = Sb(a)
    play(a, sb, [ln_rd, [("need", "lgkm", "ln")], ln_st])
    a("s_barrier")
    a("""
    v_bfe_u32 v2, v1, 2, 2
    v_lshrrev_b32 v3, 5, v1
    v_lshl_add_u32 v2, v3, 2, v2
    v_mul_u32_u24 v2, 1088, v2
    v_and_b32 v3, 3, v1
    v_lshl_add_u32 v2, v3, 3, v2
    v_bfe_u32 v3, v1, 4, 1
    v_lshl_add_u32 v2, v3, 5, v2
    v_add_u32 v2, s77, v2
    s_lshl_b32 s60, s%d, 2
    s_add_u32 s60, s60, s%d
    s_lshl_b32 s63, s60, 6
    s_add_u32 s63, s63, 0x%x
    s_lshl_b32 s60, s60, 10
    s_add_u32 s60, s60, 0x%x
    v_mov_b32 v3, s%d
    s_waitcnt vmcnt(0)
    s_barrier
    s_cmp_ge_u32 s%d, 28
    s_cbranch_scc1 L_sp_idle
    """ % (S_FU, S_WV, WS_WF, WS_WDF, S_TAG, S_FU))
    sb.q["vm"] = []
    R = 64

    def put(k):
        sb.need("lgkm", "t%d" % k)
        a("s_add_u32 s61, s60, %d" % (k * 112 * 1024))
        sb.vm("buffer_store_dwordx4 %s, v8, s[%d:%d], s61 offen sc1" % (vr(R + 4 * k, 4), SWS, SWS + 3), "st")
    for dt in range(16):
        for e in range(2):
            sb.ds("ds_read_b64_tr_b16 %s, v2 offset:%d" % (vr(R + 4 * dt + 2 * e, 2), e * 8 * 1088 + 64 * dt), "t%d" % dt)
        if dt >= 3:
            put(dt - 3)
    for k in range(13, 16):
        put(k)
    sb.drain("vm")
    r = Rec(); post(r, 3, 63); play(a, sb, r.items)
    a("L_sp_idle:")
    for _ in range(7):
        a("s_barrier")


WD, ACC2, RING = 144, 80, 32
VH, VW = 28, 30


def g2_setup(a):
    a("""
    s_lshl_b32 s60, s%d, 2
    s_lshr_b32 s61, s%d, 3
    s_add_u32 s%d, s60, s61
    s_and_b32 s%d, s%d, 7
    s_mul_i32 s60, s%d, 14
    s_mul_i32 s61, s%d, 224
    s_add_u32 s61, s61, s60
    s_lshl_b32 s61, s61, 10
    s_add_u32 s61, s61, 0x%x
    v_lshl_add_u32 v%d, v1, 4, s61
    v_add_u32 v%d, %d, v%d
    s_mul_i32 s61, s%d, 224
    s_add_u32 s61, s61, s60
    s_lshl_b32 s61, s61, 10
    s_add_u32 s61, s61, 0x%x
    v_lshl_add_u32 v%d, v1, 4, s61
    v_add_u32 v%d, %d, v%d
    s_lshl_b32 s60, s%d, 11
    """ % (S_XCD, S_LOC, S_R, S_CB, S_LOC, S_W8, S_R, WS_H, VH, VH + 1, 112 * 1024, VH,
           S_CB, WS_WDF, VW, VW + 1, 112 * 1024, VW, S_CB))
    for g in range(7):
        a("s_add_u32 s61, s60, %d\ns_sub_u32 s62, s61, %d\ns_cselect_b32 s%d, s61, s62" % (2048 * g, 7 * 2048, S_GRP + g))


def wd_loads():
    return ["buffer_load_dwordx4 %s, v%d, s[%d:%d], s%d offen offset:%d sc1" % (vr(WD + 8 * i + 4 * dt, 4), VW + dt, SWS, SWS + 3, S_GRP + (i >> 1), 1024 * (i & 1))
            for i in range(14) for dt in range(2)]


def h_flag_addr(a, v):
    a("""
    s_lshr_b32 s60, s%d, 1
    s_mul_i32 s60, s60, 56
    s_mul_i32 s61, s%d, 7
    s_add_u32 s60, s60, s61
    v_min_u32 v%d, 6, v1
    v_add_u32 v%d, s60, v%d
    v_lshlrev_b32 v%d, 7, v%d
    v_add_u32 v%d, 0x%x, v%d
    """ % (S_R, S_W8, v, v, v, v, v, v, WS_HF, v))


def g2_stream(a, sb, depth, nslot, hooks):
    def ld(i):
        tb, k = divmod(i, 14)
        sb.vm("buffer_load_dwordx4 %s, v%d, s[%d:%d], s%d offen offset:%d sc1" %
              (vr(RING + 4 * (i % nslot), 4), VH + tb, SWS, SWS + 3, S_GRP + (k >> 1), 1024 * (k & 1)), ("h", i))
    nxt = 0
    for i in range(28):
        while nxt < 28 and nxt < i + depth(i) and nxt < i + nslot:
            ld(nxt); nxt += 1
        tb, k = divmod(i, 14)
        sb.need("vm", [("h", i)])
        for dt in range(2):
            c = ACC2 + 32 * tb + 16 * dt
            a("v_mfma_f32_32x32x16_bf16 %s, %s, %s, %s" % (vr(c, 16), vr(RING + 4 * (i % nslot), 4), vr(WD + 8 * k + 4 * dt, 4), vr(c, 16) if k else "0"))
        if i in hooks:
            hooks[i]()


def put_tid(r, tb, region):
    base = min(region, 65536 - 4 * RWAVE)
    r("s_mul_i32 s60, s%d, %d\ns_add_u32 m0, s60, %d" % (S_WV, RWAVE, base))
    for i in range(32):
        r.ds("ds_write_addtid_b32 v%d offset:%d" % (ACC2 + 32 * tb + i, region - base + RPITCH * i), "put")


def spread(a, sb, items, first, last):
    n = last - first + 1
    return {first + j: (lambda part=items[j * len(items) // n:(j + 1) * len(items) // n]: play(a, sb, part)) for j in range(n)}


SD = 8


def g_tail(a, sb):
    g2_setup(a)
    wl = wd_loads()
    for x in wl[:8]:
        sb.vm(x, "wd")
    a("""
    s_lshl_b32 s60, s%d, 1
    s_lshr_b32 s61, s%d, 1
    s_add_u32 s60, s60, s61
    s_mul_i32 s60, s60, 56
    s_lshl_b32 s61, s%d, 1
    s_add_u32 s60, s60, s61
    s_and_b32 s61, s%d, 1
    s_add_u32 s60, s60, s61
    s_lshl_b32 s60, s60, 7
    s_add_u32 s77, s60, 0x%x
    v_mov_b32 v6, s%d
    """ % (S_RB, S_WV, S_FU, S_WV, WS_HF, S_TAG))
    srd(a, SO, P_OUT, 2048 * 512 * 2)
    V = SD
    a("""
    v_bfe_u32 v2, v1, 3, 1
    v_bfe_u32 v3, v1, 4, 1
    v_lshl_add_u32 v2, v3, 2, v2
    v_lshrrev_b32 v3, 5, v1
    v_lshl_add_u32 v2, v3, 1, v2
    s_lshl_b32 s60, s%d, 6
    s_lshl_b32 s61, s%d, 3
    s_add_u32 s60, s60, s61
    v_add_u32 v3, s60, v2
    v_and_b32 v4, 7, v1
    v_lshlrev_b32 v4, 4, v4
    s_lshl_b32 s60, s%d, 7
    v_add_u32 v4, s60, v4
    v_lshl_add_u32 v%d, v3, 10, v4
    v_lshlrev_b32 v5, 3, v3
    """ % (S_R, S_WV, S_CB, V + 16))
    a("""
    v_and_b32 v3, 3, v2
    s_lshl_b32 s60, s%d, 2
    v_add_u32 v3, s60, v3
    v_bfe_u32 v64, v1, 2, 1
    v_lshl_add_u32 v3, v64, 4, v3
    v_mul_u32_u24 v3, %d, v3
    v_lshrrev_b32 v64, 2, v2
    v_lshl_add_u32 v3, v64, 7, v3
    v_and_b32 v64, 3, v1
    v_lshl_add_u32 v%d, v64, 5, v3
    s_lshl_b32 s60, s%d, 1
    v_lshrrev_b32 v3, 2, v2
    v_add_u32 v3, s60, v3
    v_and_b32 v64, 7, v1
    v_xor_b32 v3, v3, v64
    v_lshlrev_b32 v3, 4, v3
    v_lshl_add_u32 v3, v64, 10, v3
    v_and_b32 v64, 3, v2
    v_lshl_add_u32 v3, v64, 2, v3
    v_add_u32 v%d, %d, v3
    """ % (S_WV, RPITCH, V + 17, S_WV, V + 18, L_YI))
    h_flag_addr(a, 27)
    a("s_cmp_lt_u32 s%d, 28\ns_cselect_b64 s[78:79], 1, 0" % S_LOC)
    sb.need("vm", "st")
    stamp(a)
    a("s_mov_b64 exec, s[78:79]")
    sb.vm("buffer_store_dword v6, off, s[%d:%d], s77 sc1" % (SWS, SWS + 3), "flag")
    a("s_mov_b64 exec, -1")
    for x in wl[8:]:
        sb.vm(x, "wd")
    a("s_mov_b32 s60, 32768\ns_mov_b32 s61, 0x%x" % WS_STATS)
    sb.vm("buffer_load_dwordx4 %s, v%d, s[%d:%d], 0 offen" % (vr(V, 4), V + 16, SX, SX + 3), "side")
    sb.vm("buffer_load_dwordx4 %s, v%d, s[%d:%d], s60 offen" % (vr(V + 4, 4), V + 16, SX, SX + 3), "side")
    sb.vm("buffer_load_dwordx2 %s, v5, s[%d:%d], s61 offen sc1" % (vr(V + 8, 2), SWS, SWS + 3), "side")
    sb.vm("buffer_load_dwordx2 %s, v5, s[%d:%d], s61 offen offset:256 sc1" % (vr(V + 10, 2), SWS, SWS + 3), "side")
    sb.vm("global_load_dwordx4 %s, v4, s[%d:%d]" % (vr(V + 12, 4), P_DSK, P_DSK + 1), "side")
    poll = "buffer_load_dword v2, v27, s[%d:%d], 0 offen sc1" % (SWS, SWS + 3)
    sb.vm(poll, "poll")
    a("""
    s_lshr_b32 s60, s%d, 3
    s_lshl_b32 s60, s60, 8
    s_lshl_b32 s61, s%d, 5
    s_add_u32 s60, s60, s61
    v_and_b32 v5, 31, v1
    v_add_u32 v5, s60, v5
    v_lshlrev_b32 v5, 5, v5
    v_add_u32 v5, 0x%x, v5
    v_lshrrev_b32 v3, 4, v1
    v_and_b32 v4, 15, v1
    s_lshl_b32 s60, s%d, 1
    v_xor_b32 v4, s60, v4
    v_lshlrev_b32 v4, 4, v4
    v_lshl_add_u32 v3, v3, 13, v4
    v_xor_b32 v4, 16, v3
    v_add_u32 v4, 0x8000, v4
    s_lshl_b32 s60, s%d, 18
    s_lshl_b32 s61, s%d, 16
    s_add_u32 s60, s60, s61
    s_lshl_b32 s61, s%d, 8
    s_add_u32 s60, s60, s61
    s_add_u32 s77, s60, 0x%x
    s_lshl_b32 s61, s%d, 11
    s_add_u32 s61, s61, %d
    v_lshl_add_u32 v6, v1, 4, s61
    """ % (S_R, S_CB, WS_YF, S_WV, S_CB, S_WV, S_R, WS_Y, S_WV, L_YI))
    sb.drain("vm")
    B = (64, 72)
    for tb in range(2):
        X, st = ACC2, V + 8 + 2 * tb
        unpack(a, X, V + 4 * tb, 4)
        unpack(a, B[tb], V + 12, 4)
        a("v_and_b32 v%d, 0xffff0000, v%d" % (st, st))
        for j in range(8):
            a("v_mul_f32 v%d, v%d, v%d" % (B[tb] + j, B[tb] + j, st + 1))
            a("v_sub_f32 v%d, v%d, v%d" % (X + 8, X + j, st))
            a("v_fma_f32 v%d, v%d, v%d, v%d" % (B[tb] + j, B[tb] + j, X + 8, X + j))
        a("v_mul_f32 v%d, v%d, v%d" % (st + 1, st + 1, st + 1))
    spin(a, "L_gh", [poll], [2])
    stamp(a)
    ypoll = "buffer_load_dword v2, v5, s[%d:%d], 0 offen sc1" % (SWS, SWS + 3)
    r = Rec(); put_tid(r, 0, L_G0)
    hooks = spread(a, sb, r.items, 15, 22)
    hooks[24] = lambda: sb.vm(ypoll, "ypoll")
    g2_stream(a, sb, lambda i: 8, 8, hooks)
    stamp(a)
    sb.need("vm", "ypoll")
    spin(a, "L_gy", [ypoll], [2])
    YR = V
    sb.vm("buffer_load_dwordx4 %s, v3, s[%d:%d], s77 offen sc1" % (vr(YR, 4), SWS, SWS + 3), "y")
    sb.vm("buffer_load_dwordx4 %s, v4, s[%d:%d], s77 offen sc1" % (vr(YR + 4, 4), SWS, SWS + 3), "y")
    a("s_nop 4")
    r = Rec(); put_tid(r, 1, L_G1); play(a, sb, r.items)
    a("s_lshl_b32 s60, s%d, 2\ns_add_u32 s60, s60, %d\nv_mov_b32 v3, s60\nv_mov_b32 v4, %d\nv_mov_b32 v5, -1" % (S_WV, L_FLG, L_FLG))
    sb.need("vm", "y")
    sb.ds("ds_write_b128 v6, %s" % vr(YR, 4), "put")
    sb.ds("ds_write_b128 v6, %s offset:1024" % vr(YR + 4, 4), "put")
    sb.drain("lgkm")
    a("ds_write_b32 v3, v5 offset:32")
    stamp(a)
    lds_wait(a, "L_gw", 4, RING, (1, 2))
    stamp(a)
    T = WD

    def reads(region, dst, tag, vaddr):
        for q in range(4):
            for h in range(2):
                sb.ds("ds_read_b128 %s, v%d offset:%d" % (vr(dst + 8 * q + 4 * h, 4), vaddr, region + RWAVE * q + 16 * h), tag)

    def fold(dst, n):
        while n > 1:
            n //= 2
            for q in range(n):
                for j in range(8):
                    a("v_add_f32 v%d, v%d, v%d" % (dst + 8 * q + j, dst + 8 * q + j, dst + 8 * (q + n) + j))
    a("v_add_u32 v2, %d, v%d\nv_add_u32 v3, %d, v%d" % (L_G1, V + 17, L_H0, V + 17))
    for tb in range(2):
        for i in range(4):
            sb.ds("ds_read_b32 v%d, v%d offset:%d" % (RING + 4 * tb + i, V + 18, 256 * i + 128 * tb), "yr")
    reads(L_G0, T, "p0", V + 17)
    sb.need("lgkm", "yr")
    reads(0, T + 32, "p1", 3)
    for tb in range(2):
        unpack(a, RING + 8, RING + 4 * tb, 4)
        for j in range(8):
            a("v_add_f32 v%d, v%d, v%d" % (B[tb] + j, B[tb] + j, RING + 8 + j))
    sb.need("lgkm", "p0")
    reads(0, T + 64, "p2", 2)
    sb.need("lgkm", "p1")
    fold(T, 8)
    for j in range(8):
        a("v_fma_f32 v%d, v%d, v%d, v%d" % (T + j, T + j, V + 9, B[0] + j))
    for j in range(4):
        a("v_cvt_pk_bf16_f32 v%d, v%d, v%d" % (T + 8 + j, T + 2 * j, T + 2 * j + 1))
    sb.vm("buffer_store_dwordx4 %s, v%d, s[%d:%d], 0 offen" % (vr(T + 8, 4), V + 16, SO, SO + 3), "st")
    sb.need("lgkm", "p2")
    fold(T + 64, 4)
    for j in range(8):
        a("v_fma_f32 v%d, v%d, v%d, v%d" % (B[1] + j, T + 64 + j, V + 11, B[1] + j))
    a("s_mov_b32 s60, 32768")
    stamp(a)
    a("s_barrier")
    stamp(a)
    for q in range(4):
        for h in range(2):
            sb.ds("ds_read_b128 %s, v%d offset:%d" % (vr(T + 16 + 8 * q + 4 * h, 4), V + 17, L_H1 + RWAVE * q + 16 * h), "q%d" % (q >> 1))
    for q in (0, 2):
        sb.need("lgkm", "q%d" % (q >> 1))
        for j in range(4):
            c = T + 16 + 8 * q + 2 * j
            a("v_pk_add_f32 %s, %s, %s" % (vr(c, 2), vr(c, 2), vr(c + 8, 2)))
    for j in range(4):
        c = T + 16 + 2 * j
        a("v_pk_add_f32 %s, %s, %s" % (vr(c, 2), vr(c, 2), vr(c + 16, 2)))
    for j in range(4):
        c = T + 16 + 2 * j
        a("v_pk_fma_f32 %s, %s, %s, %s op_sel:[0,1,0]" % (vr(c, 2), vr(c, 2), vr(V + 10, 2), vr(B[1] + 2 * j, 2)))
    for j in range(4):
        a("v_cvt_pk_bf16_f32 v%d, v%d, v%d" % (T + 64 + j, T + 16 + 2 * j, T + 17 + 2 * j))
    sb.vm("buffer_store_dwordx4 %s, v%d, s[%d:%d], s60 offen" % (vr(T + 64, 4), V + 16, SO, SO + 3), "st")


def g_waves(a):
    sb = Sb(a)
    V = 48
    a("L_G:")
    ln_block(a)
    a("""
    s_lshl_b32 s62, s%d, 13
    s_lshl_b32 s61, s%d, 11
    s_add_u32 s62, s62, s61
    v_lshlrev_b32 v8, 4, v1
    s_waitcnt lgkmcnt(0)
    """ % (S_LN, S_WV))
    descriptors(a)
    a("buffer_load_dwordx4 %s, v8, s[%d:%d], s62 offen" % (vr(V, 4), SX, SX + 3))
    a("buffer_load_dwordx4 %s, v8, s[%d:%d], s62 offen offset:1024" % (vr(V + 4, 4), SX, SX + 3))
    stamp_init(a)
    roles(a)
    g_addresses(a)
    make_tag(a)
    a("v_mov_b32 v%d, v8" % (V + 8))
    a("s_cmp_ge_u32 s%d, 28\ns_cbranch_scc1 L_sp_issue\ns_waitcnt vmcnt(0)\nL_ln_go:" % S_LOC)
    stamp(a)
    ln_part1(a, sb, V)
    a("""
    s_lshl_b32 s60, s%d, 13
    s_lshl_b32 s61, s%d, 11
    s_add_u32 s60, s60, s61
    s_add_u32 s61, s60, 0x%x
    s_cmp_ge_u32 s%d, 28
    """ % (S_LN, S_WV, WS_XNB, S_LOC))
    sb.drain("lgkm")
    stamp(a)
    if OPT["stamps"]:
        a("s_cmp_ge_u32 s%d, 28" % S_LOC)
    a("s_barrier\ns_cbranch_scc1 L_sp_job")
    stamp(a)
    ln_rd, ln_st = ln_part2(9, 8, FA7)
    g_main(a, sb, ln_rd, ln_st)
    a("L_g_tail:")
    stamp(a)
    g_tail(a, sb)
    stamp_flush(a)
    a("s_endpgm")
    a("L_sp_issue:")
    spare_issue(a)
    a("s_waitcnt vmcnt(16)\ns_branch L_ln_go")
    a("L_sp_job:")
    spare_job(a, ln_rd, ln_st)
    a("s_branch L_g_tail")


DX, DW = 8, 16
PR, Z8, Z1, Z256, Z16, Z2, AR, CB, KT = 24, 30, 33, 36, 39, 42, 45, 47, 50
KAD, KRD = 20, 22
PKE, PKG, FE, FG, KD = 64, 96, 144, 176, 208


def h_offsets(a):
    a("""
    v_lshrrev_b32 v2, 3, v1
    v_and_b32 v3, 7, v1
    v_lshrrev_b32 v4, 4, v1
    v_xor_b32 v5, v3, v4
    v_lshlrev_b32 v5, 4, v5
    v_lshl_add_u32 v5, v2, 10, v5
    s_lshl_b32 s60, s%d, 18
    s_lshl_b32 s61, s%d, 16
    s_add_u32 s60, s60, s61
    v_add_u32 v5, s60, v5
    """ % (S_RB, S_WV))
    for i in range(8):
        a("v_add_u32 v%d, %d, v5" % (DX + i, i * 8192 - (i & 3) * 1024))
        if i & 1:
            a("v_xor_b32 v%d, 64, v%d" % (DX + i, DX + i))
    a("""
    s_lshr_b32 s60, s%d, 1
    s_lshl_b32 s60, s60, 2
    v_bfe_u32 v4, v1, 4, 1
    v_lshl_add_u32 v4, v4, 1, s60
    v_xor_b32 v4, v3, v4
    v_lshlrev_b32 v4, 4, v4
    v_mul_u32_u24 v5, 3584, v2
    v_add_u32 v5, v5, v4
    s_and_b32 s60, s%d, 1
    s_mul_i32 s60, s60, %d
    s_lshl_b32 s61, s%d, 7
    s_add_u32 s60, s60, s61
    v_add_u32 v5, s60, v5
    """ % (S_WV, S_WV, 32 * 3584, S_FU))
    for i in range(4):
        a("v_add_u32 v%d, %d, v5" % (DW + i, i * 8 * 3584 - i * 1024))
    a("""
    s_add_u32 s%d, s%d, s%d
    s_lshl_b32 s60, s%d, 13
    s_lshl_b32 s61, s%d, 12
    s_cmp_lt_u32 s%d, 28
    s_cselect_b32 s62, -1, 0
    s_cselect_b32 s63, 0, %d
    """ % (S_ORD, S_RB, S_FU, S_WV, S_WV, S_LOC, 102400))
    for sl in range(3):
        for j, (base, reg) in enumerate(((XS[sl], 60), (XS[sl] + 4096, 60), (WSL[sl], 61))):
            d = S_M0 + 3 * sl + j
            a("s_add_u32 s%d, s%d, %d\ns_and_b32 s%d, s%d, s62\ns_or_b32 s%d, s%d, s63" % (d, reg, base, d, d, d, d))


def dma(stage):
    r = Rec()
    sl = stage % 3
    with r.group():
        r("s_add_u32 s%d, s%d, %d\ns_and_b32 s%d, s%d, 3" % (S_KW, S_ORD, stage, S_KW, S_KW))
        if stage & 4:
            r("s_or_b32 s%d, s%d, 4" % (S_KW, S_KW))
        r("s_lshl_b32 s%d, s%d, 7\ns_mul_i32 s%d, s%d, %d" % (S_KX, S_KW, S_KW, S_KW, 64 * 3584))
    for j in range(3):
        for i in range(4):
            with r.group():
                if i == 0:
                    r("s_mov_b32 m0, s%d" % (S_M0 + 3 * sl + j))
                v, d, k = (DX + 4 * j + i, SX, S_KX) if j < 2 else (DW + i, SW, S_KW)
                r.vm("buffer_load_dwordx4 v%d, s[%d:%d], s%d offen offset:%d lds" % (v, d, d + 3, k, 1024 * i), ("S", stage))
    return r.items


def cmul4(r, jobs):
    for d, p, z in jobs:
        r("v_mul_f32 v%d, v%d, v%d\nv_mul_f32 v%d, v%d, v%d" % (d, p, z, d + 1, p, z + 1))
    for d, p, z in jobs:
        r("v_fmac_f32 v%d, v%d, v%d\nv_fmac_f32 v%d, v%d, v%d" % (d, p + 1, z + 2, d + 1, p + 1, z))


def neg(r, z):
    r("v_xor_b32 v%d, 0x80000000, v%d" % (z + 2, z + 1))


def kg_issue(a, sb):
    a("""
    s_lshl_b32 s%d, s%d, 5
    s_add_u32 s%d, s%d, s%d
    s_lshl_b32 s60, s%d, 9
    v_lshl_add_u32 v6, v0, 1, s60
    s_lshl_b32 s60, s%d, 2
    s_load_dword s%d, s[%d:%d], s60
    """ % (S_P, S_XCD, S_P, S_P, S_LOC, S_P, S_P, S_LDT, P_LDT, P_LDT + 1))
    for i, p in enumerate((P_ARE, P_AIM, P_BRE, P_BIM, P_CRE, P_CIM)):
        sb.vm("global_load_ushort v%d, v6, s[%d:%d]" % (PR + i, p, p + 1), "kp")


def kg_powers(r):
    T = KT
    r("""
    s_lshr_b32 s60, s%d, 1
    s_lshl_b32 s60, s60, 4
    s_lshr_b32 s60, s%d, s60
    s_lshl_b32 s60, s60, 16
    v_mov_b32 v%d, 0x%x
    v_mul_f32 v%d, s60, v%d
    v_exp_f32 v%d, v%d
    v_cvt_pk_bf16_f32 v%d, v%d, v%d
    v_and_b32 v%d, 0xffff0000, v%d
    """ % (S_WV, S_LDT, T, LOG2E, T, T, T, T, T, T, T, T, T))
    r.need("vm", "kp")
    for i in range(6):
        r("v_lshlrev_b32 v%d, 16, v%d" % (PR + i, PR + i))
    r("v_mul_f32 v%d, v%d, v%d\nv_mul_f32 v%d, v%d, v%d" % (AR, PR, T, AR + 1, PR + 1, T))
    r("v_mul_f32 v%d, v%d, v%d\nv_mul_f32 v%d, v%d, v%d" % (Z2, PR + 2, T, Z2 + 1, PR + 3, T))
    neg(r, Z2)
    cmul4(r, [(CB, PR + 4, Z2)])
    zs = ((Z8, 8), (Z1, 1), (Z256, 256))
    for k, (z, l) in enumerate(zs):
        r("v_mul_f32 v%d, 0x%x, v%d" % (T + 2 * k, f2u(l * math.log2(math.e)), AR))
        r("v_mul_f32 v%d, 0x%x, v%d" % (T + 2 * k + 1, f2u(l / (2 * math.pi)), AR + 1))
    for k, (z, l) in enumerate(zs):
        r("v_fract_f32 v%d, v%d\nv_exp_f32 v%d, v%d" % (T + 2 * k + 1, T + 2 * k + 1, T + 2 * k, T + 2 * k))
    for k, (z, l) in enumerate(zs):
        r("v_cos_f32 v%d, v%d\nv_sin_f32 v%d, v%d" % (z, T + 2 * k + 1, z + 1, T + 2 * k + 1))
    for k, (z, l) in enumerate(zs):
        r("v_mul_f32 v%d, v%d, v%d\nv_mul_f32 v%d, v%d, v%d" % (z, z, T + 2 * k, z + 1, z + 1, T + 2 * k))
    for z, l in zs:
        neg(r, z)
    cmul4(r, [(Z16, Z8, Z8), (Z2, Z1, Z1)])
    neg(r, Z16); neg(r, Z2)
    e0, e1, n0, n1 = T, T + 2, T + 4, T + 6
    r("v_cvt_pk_bf16_f32 v%d, 1.0, v%d\nv_cvt_pk_bf16_f32 v%d, 0, v%d" % (PKE, Z8, PKE + 16, Z8 + 1))
    cmul4(r, [(e1, Z8, Z16)])
    cur0, cur1 = Z16, e1
    for j in range(1, 16):
        if j < 15:
            cmul4(r, [(n0, cur0, Z16), (n1, cur1, Z16)])
        r("v_cvt_pk_bf16_f32 v%d, v%d, v%d" % (PKE + j, cur0, cur1))
        r("v_cvt_pk_bf16_f32 v%d, v%d, v%d" % (PKE + 16 + j, cur0 + 1, cur1 + 1))
        cur0, cur1 = n0, n1
        e0, e1, n0, n1 = n0, n1, e0, e1


def kg_rows(r):
    g = [CB] + [FE + 2 * i for i in range(20)]
    cmul4(r, [(g[1], g[0], Z1), (g[2], g[0], Z2), (g[8], g[0], Z256)])
    cmul4(r, [(g[3], g[1], Z2), (g[4], g[2], Z2), (g[12], g[8], Z256), (g[9], g[2], Z256)])
    cmul4(r, [(g[5], g[3], Z2), (g[6], g[4], Z2), (g[14], g[12], Z256), (g[10], g[4], Z256)])
    cmul4(r, [(g[7], g[5], Z2), (g[11], g[6], Z256), (g[16], g[14], Z256), (g[13], g[10], Z256)])
    cmul4(r, [(g[15], g[13], Z256), (g[17], g[16], Z256)])
    for k in (18, 19, 20):
        cmul4(r, [(g[k], g[k - 1], Z256)])
    for j in range(11):
        hi = g[2 * j + 1] if j < 10 else g[20]
        r("v_cvt_pk_bf16_f32 v%d, v%d, v%d" % (PKG + j, g[2 * j], hi))
        r("v_cvt_pk_bf16_f32 v%d, -v%d, -v%d" % (PKG + 12 + j, g[2 * j] + 1, hi + 1))
    r("v_mov_b32 v%d, 0\nv_mov_b32 v%d, 0" % (PKG + 11, PKG + 23))
    r("""
    s_lshl_b32 s60, s%d, 12
    s_add_u32 s60, s60, %d
    v_bfe_u32 v2, v1, 2, 2
    v_lshlrev_b32 v3, 4, v2
    v_lshl_add_u32 v3, v1, 6, v3
    v_add_u32 v%d, s60, v3
    v_lshrrev_b32 v3, 5, v1
    v_lshl_add_u32 v2, v3, 3, v2
    v_lshlrev_b32 v2, 6, v2
    v_bfe_u32 v4, v1, 4, 1
    v_xor_b32 v3, v3, v4
    v_bfe_u32 v4, v1, 1, 1
    v_lshl_add_u32 v3, v3, 1, v4
    v_lshl_add_u32 v2, v3, 4, v2
    v_and_b32 v3, 1, v1
    v_lshl_add_u32 v2, v3, 3, v2
    v_add_u32 v%d, s60, v2
    v_xor_b32 v%d, 16, v%d
    """ % (S_WV, EXT, KAD, KRD, KRD + 1, KRD))


def kg_transpose(r):
    for src, n, dst, tag in ((PKE, 4, FE, "fe"), (PKE + 16, 4, FE + 16, "fe"), (PKG, 3, FG, "fg"), (PKG + 12, 3, FG + 16, "fg")):
        for p in range(n):
            if p:
                r("v_xor_b32 v2, %d, v%d" % (16 * p, KAD))
            r.ds("ds_write_b128 v%d, %s" % (2 if p else KAD, vr(src + 4 * p, 4)), "kw")
        for k in range(4):
            for e in range(2):
                r.ds("ds_read_b64_tr_b16 %s, v%d offset:%d" % (vr(dst + 4 * k + 2 * e, 2), KRD + e, k * 1024 + e * 256), tag)


def kg_product(r):
    for k in range(8):
        r("v_mfma_f32_32x32x16_bf16 %s, %s, %s, %s" % (vr(KD, 16), vr(FG + 4 * k, 4), vr(FE + 4 * k, 4), vr(KD, 16) if k else "0"))
    r("""
    s_lshr_b32 s60, s%d, 1
    s_lshl_b32 s60, s60, 13
    s_add_u32 s60, s60, %d
    s_and_b32 s61, s%d, 1
    s_mul_i32 s61, s61, 5120
    s_add_u32 s62, s60, s61
    v_lshl_add_u32 v%d, v1, 4, s62
    s_sub_u32 s62, s60, s61
    s_add_u32 s62, s62, 5120
    v_lshl_add_u32 v%d, v1, 4, s62
    s_add_u32 s77, s60, 3072
    """ % (S_WV, EXT, S_WV, KAD, KAD + 1))
    for i in range(3):
        r.ds("ds_write_b128 v%d, %s offset:%d" % (KAD, vr(KD + 4 * i, 4), 1024 * i), "kw")


def kg_table(r):
    T = KT
    for i in range(3):
        r.ds("ds_read_b128 %s, v%d offset:%d" % (vr(FE + 4 * i, 4), KAD + 1, 1024 * i), "kx")
    r("""
    v_and_b32 v%d, 31, v1
    v_lshrrev_b32 v%d, 5, v1
    v_lshlrev_b32 v%d, 3, v%d
    v_lshl_add_u32 v%d, v%d, 4, v%d
    v_add_u32 v%d, s77, v%d
    v_cmp_gt_u32 vcc, 32, v1
    v_lshlrev_b32 v%d, 3, v%d
    v_add_u32 v%d, 512, v%d
    v_lshlrev_b32 v%d, 2, v%d
    v_add_u32 v%d, 768, v%d
    v_cndmask_b32 v%d, v%d, v%d, vcc
    v_add_u32 v%d, s77, v%d
    v_mov_b32 v%d, 128
    v_cndmask_b32 v%d, v%d, 4, vcc
    v_add_u32 v%d, v%d, v%d
    v_lshlrev_b32 v%d, 8, v%d
    v_lshl_add_u32 v%d, v%d, 1, v%d
    v_add_u32 v%d, s77, v%d
    """ % (T, T + 1, T + 2, T + 1, T + 2, T, T + 2, T + 2, T + 2,
           T + 3, T, T + 3, T + 3, T + 4, T, T + 4, T + 4, T + 3, T + 4, T + 3, T + 3, T + 3,
           T + 4, T + 4, T + 4, T + 4, T + 4, T + 3,
           T + 5, T + 1, T + 5, T, T + 5, T + 5, T + 5))
    r.need("lgkm", "kx")
    for i in range(12):
        r("v_add_f32 v%d, v%d, v%d" % (KD + i, KD + i, FE + i))
    for i in range(4):
        r("v_cvt_pk_bf16_f32 v%d, v%d, v%d" % (FE + i, KD + 2 * i, KD + 2 * i + 1))
    for i in range(4):
        r("v_cvt_pk_bf16_f32 v%d, v%d, v%d" % (FE + 4 + i, KD + 8 + i, KD + 8 + i))
    r.ds("ds_write_b64 v%d, %s" % (T + 2, vr(FE, 2)), "kw")
    r.ds("ds_write_b32 v%d, v%d" % (T + 3, FE + 2), "kw")
    r.ds("ds_write_b32 v%d, v%d" % (T + 4, FE + 3), "kw")
    for i in range(4):
        r.ds("ds_write_b16 v%d, v%d offset:%d" % (T + 5, FE + 4 + i, 1024 + 64 * i), "kw")


XAD, XG, XO, XN, XF, XFA, XNA = 24, (36, 112), (64, 84), 104, 124, 123, 47
TAB = EXT + 3072


def ex_addresses(r):
    T, U = 144, 156
    r("""
    v_lshlrev_b32 v%d, 3, v0
    v_cvt_f32_u32 v%d, v%d
    v_lshlrev_b32 v%d, 4, v0
    """ % (T, T, T, U))
    for i in range(1, 12):
        r("v_add_f32 v%d, 0x%x, v%d" % (T + i, f2u(float(i)), T))
    for i in range(6):
        r("v_cvt_pk_bf16_f32 v%d, v%d, v%d" % (T + 2 * i, T + 2 * i, T + 2 * i + 1))
    r("v_cmp_gt_u32 s[78:79], 16, v0")
    for i in range(11):
        r("v_lshlrev_b32_sdwa v%d, 1, v%d dst_sel:DWORD dst_unused:UNUSED_PAD src0_sel:DWORD src1_sel:WORD_%d" % (XAD + i, T + 2 * (i >> 1), i & 1))
        r("v_add_u32 v%d, %d, v%d" % (T + 1, IDXC + 2 * i, U))
        r("v_cndmask_b32 v%d, v%d, v%d, s[78:79]" % (XAD + i, XAD + i, T + 1))
    r("v_add_u32 v%d, %d, v%d" % (XAD + 11, L_TC + 32, U))


def ex_gather(r):
    for ch in range(2):
        for i in range(11):
            r.ds("ds_read_u16 v%d, v%d offset:%d" % (XG[ch] + i, XAD + i, TAB - IDXC + 8192 * ch), "g%d" % ch)
    r("""
    v_bfe_u32 v2, v1, 3, 1
    v_lshlrev_b32 v3, 13, v2
    v_add_u32 v3, %d, v3
    """ % TAB)
    r.ds("ds_read_b64 %s, v3" % vr(XF + 2, 2), "gf")
    r("""
    v_mul_u32_u24 v2, %d, v2
    v_and_b32 v3, 3, v1
    v_mul_u32_u24 v4, %d, v3
    v_add_u32 v2, v2, v4
    v_bfe_u32 v4, v1, 2, 1
    v_lshl_add_u32 v2, v4, 4, v2
    v_add_u32 v%d, %d, v2
    v_mul_u32_u24 v4, v4, v3
    v_cmp_ne_u32 s[78:79], 0, v4
    v_lshlrev_b32 v3, 4, v3
    v_sub_u32 v5, 64, v3
    v_mov_b32 v%d, 0
    v_mov_b32 v%d, 0
    """ % (TCH, TCOPY, XFA, L_TC, XF, XF + 1))
    for ch in range(2):
        S, D = XG[ch], XO[ch]
        O, D2, O2 = D + 6, D + 9, D + 13
        r.need("lgkm", "g%d" % ch)
        for k in range(4):
            r("v_lshl_or_b32 v%d, v%d, 16, v%d" % (D + k, S + 2 * k + 1, S + 2 * k))
            r("v_lshl_or_b32 v%d, v%d, 16, v%d" % (O + k, S + 2 * k + 2, S + 2 * k + 1))
        for k in range(1, 5):
            r("v_lshl_or_b32 v%d, v%d, 16, v%d" % (D2 + k, S + 2 * k + 1, S + 2 * k))
            r("v_lshl_or_b32 v%d, v%d, 16, v%d" % (O2 + k, S + 2 * k + 2, S + 2 * k + 1))
    r.need("lgkm", "gf")
    r("""
    v_lshlrev_b64 %s, v5, %s
    v_cndmask_b32 v%d, 0, v%d, s[78:79]
    v_cndmask_b32 v%d, 0, v%d, s[78:79]
    """ % (vr(XF + 2, 2), vr(XF + 2, 2), XF + 2, XF + 2, XF + 3, XF + 3))


def ex_write(r):
    for ch in range(2):
        D = XO[ch]
        for phi, src in enumerate((D, D + 6, D + 10, D + 14)):
            r.ds("ds_write_b128 v%d, %s offset:%d" % (XAD + 11, vr(src, 4), ch * TCH + phi * TCOPY), "xw")
    r.ds("ds_write_b128 v%d, %s" % (XFA, vr(XF, 4)), "xw")


def xn_issue(r):
    r("""
    v_lshrrev_b32 v2, 1, v1
    v_and_b32 v3, 1, v1
    v_lshlrev_b32 v4, 13, v2
    v_lshl_add_u32 v4, v3, 4, v4
    s_lshl_b32 s60, s%d, 5
    s_lshl_b32 s61, s%d, 19
    s_add_u32 s60, s60, s61
    s_add_u32 s60, s60, 0x%x
    s_add_u32 s61, s60, 0x40000
    """ % (S_P, S_WV, WS_XNB))
    r.vm("buffer_load_dwordx4 %s, v4, s[%d:%d], s60 offen sc1" % (vr(XN, 4), SWS, SWS + 3), "xn")
    r.vm("buffer_load_dwordx4 %s, v4, s[%d:%d], s61 offen sc1" % (vr(XN + 4, 4), SWS, SWS + 3), "xn")
    r("""
    v_mul_u32_u24 v3, %d, v3
    v_lshl_add_u32 v3, v2, 4, v3
    s_lshl_b32 s60, s%d, 10
    s_add_u32 s60, s60, %d
    v_add_u32 v%d, s60, v3
    v_lshrrev_b32 v2, 7, v0
    v_mul_u32_u24 v2, %d, v2
    v_and_b32 v3, 127, v0
    v_lshl_add_u32 v2, v3, 2, v2
    v_add_u32 v2, %d, v2
    v_mov_b32 v3, 0
    v_lshlrev_b32 v4, 2, v1
    v_min_u32 v4, 60, v4
    v_add_u32 v4, %d, v4
    """ % (UCH, S_WV, L_UI + 512, XNA, UCH, L_UI, L_FLG))
    r.ds("ds_write_b32 v2, v3", "xw")
    r.ds("ds_write_b32 v4, v3", "xw")


def xn_write(r):
    r.need("vm", "xn")
    r.ds("ds_write_b128 v%d, %s" % (XNA, vr(XN, 4)), "xw")
    r.ds("ds_write_b128 v%d, %s offset:512" % (XNA, vr(XN + 4, 4)), "xw")


CV = 32
CRA, CRB = 128, 129


def conv_addresses(r):
    r("""
    v_and_b32 v2, 15, v1
    v_lshrrev_b32 v3, 4, v1
    v_add_u32 v4, 1, v2
    v_and_b32 v5, 3, v4
    v_mul_u32_u24 v5, %d, v5
    v_lshrrev_b32 v4, 2, v4
    v_lshl_add_u32 v5, v4, 3, v5
    v_lshl_add_u32 v5, v3, 4, v5
    s_lshr_b32 s60, s%d, 1
    s_and_b32 s61, s%d, 1
    s_lshl_b32 s61, s61, 8
    s_mul_i32 s62, s60, %d
    s_add_u32 s62, s62, s61
    s_add_u32 s62, s62, %d
    v_add_u32 v%d, s62, v5
    v_lshlrev_b32 v4, 5, v2
    v_lshlrev_b32 v5, 4, v3
    v_sub_u32 v4, v4, v5
    s_mul_i32 s62, s60, %d
    s_sub_u32 s62, s62, s61
    s_add_u32 s62, s62, %d
    v_add_u32 v%d, s62, v4
    v_lshl_add_u32 v%d, v2, 6, v5
    """ % (TCOPY, S_WV, S_WV, TCH, L_TC, CRA, UCH, L_UI + 16 * 33 - 192, CRB, CRB + 1))


def conv_main(a, sb, fill):
    A, FA, FB = CV, CV + 32, CV + 64

    def ra(mu, nu):
        for e in range(2):
            sb.ds("ds_read_b64 %s, v%d offset:%d" % (vr(FA + 4 * nu + 2 * e, 2), CRA, 64 * mu + 512 * nu + 8 * e), ("a", mu, nu))

    def rb(mu, de):
        sb.ds("ds_read_b128 %s, v%d offset:%d" % (vr(FB + 4 * de, 4), CRB, 512 * de + 64 * (3 - mu)), ("b", mu, de))
    ra(0, 0)
    for de in range(7, -1, -1):
        rb(0, de)
    for nu in range(1, 8):
        ra(0, nu)
    n = 0
    for mu in range(4):
        for nu in range(8):
            for j in range(7, nu - 1, -1):
                sb.need("lgkm", [("a", mu, nu), ("b", mu, j - nu)])
                c = A + 4 * j
                a("v_mfma_f32_16x16x32_bf16 %s, %s, %s, %s" % (vr(c, 4), vr(FA + 4 * nu, 4), vr(FB + 4 * (j - nu), 4),
                                                              "0" if mu == 0 and nu == 0 else vr(c, 4)))
                if mu < 3 and j == 7 and nu > 0:
                    ra(mu + 1, nu - 1)
                if mu < 3 and j == 7:
                    rb(mu + 1, 7 - nu)
                n += 1
                if fill and n % 6 == 3:
                    sb.vm(fill.pop(0), "wd")
            if mu < 3 and nu == 7:
                ra(mu + 1, 7)
    assert not fill


def conv_out(a, sb):
    A, T = CV, CV + 32
    a("s_lshl_b32 s60, s%d, 13\ns_add_u32 m0, s60, %d" % (S_WV, L_CRED))
    for r in range(32):
        sb.ds("ds_write_addtid_b32 v%d offset:%d" % (A + r, 256 * r), "w")
    a("""
    s_lshl_b32 s60, s%d, 2
    s_add_u32 s60, s60, %d
    v_mov_b32 v20, s60
    v_mov_b32 v21, %d
    v_mov_b32 v22, -1
    v_mov_b32 v23, s%d
    s_lshl_b32 s60, s%d, 13
    s_lshl_b32 s61, s%d, 11
    s_add_u32 s60, s60, s61
    s_add_u32 s63, s60, 0x%x
    s_lshl_b32 s60, s%d, 8
    s_add_u32 s60, s60, s%d
    s_lshl_b32 s60, s60, 5
    s_add_u32 s77, s60, 0x%x
    """ % (S_WV, L_FLG, L_FLG, S_TAG, S_P, S_WV, WS_Y, S_WV, S_P, WS_YF))
    sb.drain("lgkm")
    a("ds_write_b32 v20, v22")
    a("s_add_u32 m0, s61, %d" % L_CRED)
    lds_wait(a, "L_cw", 21, T, (0,))
    for t in range(2):
        for w in range(4):
            for r in range(4):
                sb.ds("ds_read_addtid_b32 v%d offset:%d" % (T + 16 * t + 4 * w + r, 8192 * w + 1024 * t + 256 * r), "r%d" % t)
    for t in range(2):
        sb.need("lgkm", "r%d" % t)
        b = T + 16 * t
        for c in range(2):
            for r in range(4):
                a("v_add_f32 v%d, v%d, v%d" % (b + 8 * c + r, b + 8 * c + r, b + 8 * c + 4 + r))
        for r in range(4):
            a("v_cvt_pk_bf16_f32 v%d, v%d, v%d" % (A + 4 * t + r, b + r, b + 8 + r))
        sb.vm("buffer_store_dwordx4 %s, v%d, s[%d:%d], s63 offen offset:%d sc1" % (vr(A + 4 * t, 4), CRB + 1, SWS, SWS + 3, 1024 * t), "st")


def h_waves(a):
    sb = Sb(a)
    roles(a)
    h_offsets(a)
    a("s_waitcnt lgkmcnt(0)")
    descriptors(a)
    a("""
    s_cmp_lt_u32 s%d, 2
    s_cselect_b32 s%d, s%d, s%d
    s_cselect_b32 s%d, s%d, s%d
    s_and_b32 s%d, s62, 0x%x
    s_mov_b32 s%d, 0x20000
    s_and_b32 s%d, s62, s%d
    """ % (S_WV, SW, P_WG, P_WU, SW + 1, P_WG + 1, P_WU + 1, SW + 2, 512 * 1792 * 2, SW + 3, SX + 2, SX + 2))
    stamp_init(a)
    kg_issue(a, sb)
    play(a, sb, dma(0) + dma(1) + dma(2))
    stamp(a)
    make_tag(a)

    def barrier(*need):
        sb.need("vm", list(need))
        sb.drain("lgkm")
        stamp(a)
        a("s_barrier")
        stamp(a)

    def piece(*fns):
        r = Rec()
        for f in fns:
            f(r)
        return r.items
    play(a, sb, piece(kg_powers))
    barrier(("S", 0))
    play(a, sb, piece(kg_rows))
    barrier(("S", 1))
    play(a, sb, weave(piece(kg_transpose), dma(3)))
    barrier(("S", 2))

    def ln_flag(r):
        ln_block(r)
        r("s_lshl_b32 s60, s%d, 4\ns_add_u32 s63, s60, 0x%x\nv_mov_b32 v2, s%d\ns_cmp_eq_u32 s%d, 0" % (S_LN, WS_LNF, S_TAG, S_WV))
        with r.group():
            r("s_cselect_b64 exec, 1, 0")
            r.vm("buffer_store_dword v2, off, s[%d:%d], s63 sc1" % (SWS, SWS + 3), "flag")
            r("s_mov_b64 exec, -1")
    play(a, sb, piece(ln_flag) + weave(piece(kg_product, ex_addresses), dma(4)))
    barrier(("S", 3))
    play(a, sb, weave(piece(kg_table), dma(5)))
    barrier(("S", 4))
    play(a, sb, weave(piece(ex_gather), dma(6)))
    barrier(("S", 5))
    a("""
    v_lshlrev_b32 v20, 4, v0
    v_add_u32 v20, 0x%x, v20
    v_min_u32 v21, 27, v1
    s_mul_i32 s60, s%d, 28
    v_add_u32 v21, s60, v21
    v_lshlrev_b32 v21, 6, v21
    v_add_u32 v21, 0x%x, v21
    """ % (WS_LNF, S_WV, WS_WF))
    polls = ["buffer_load_dword v%d, v%d, s[%d:%d], 0 offen sc1" % (22 + i, 20 + i, SWS, SWS + 3) for i in range(2)]
    for x in polls:
        sb.vm(x, "poll")
    play(a, sb, weave(piece(g2_setup, conv_addresses), dma(7)))
    sb.need("vm", ["poll", ("S", 6)])
    spin(a, "L_hp", polls, [22, 23])
    barrier()
    wl = wd_loads()

    def epoch(r):
        r("s_or_b32 s60, s2, s%d\nv_mov_b32 v2, s%d\ns_cmp_eq_u32 s60, 0" % (S_WV, S_TAG))
        with r.group():
            r("s_cselect_b64 exec, 1, 0")
            r.vm("buffer_store_dword v2, off, s[%d:%d], 0 sc1" % (SWS, SWS + 3), "flag")
            r("s_mov_b64 exec, -1")
    play(a, sb, piece(xn_issue, epoch) + weave(piece(ex_write), [[("vm", x, "wd")] for x in wl[:6]]))
    barrier(("S", 7))
    play(a, sb, piece(xn_write))
    for x in wl[6:10]:
        sb.vm(x, "wd")
    barrier()
    h_flag_addr(a, 27)
    for x in wl[10:14]:
        sb.vm(x, "wd")
    barrier()
    conv_main(a, sb, wl[14:])
    stamp(a)
    conv_out(a, sb)
    stamp(a)
    poll = "buffer_load_dword v2, v27, s[%d:%d], 0 offen sc1" % (SWS, SWS + 3)
    sb.vm(poll, "poll")
    sb.drain("vm")
    r = Rec(); post(r, 23, 77); play(a, sb, r.items)
    spin(a, "L_hh", [poll], [2])
    stamp(a)
    r = Rec()
    r("s_mul_i32 s60, s%d, %d\ns_add_u32 s60, s60, %d\nv_lshl_add_u32 v3, v1, 2, s60" % (S_WV, RWAVE, L_H0))
    for i in range(32):
        r.ds("ds_write_b32 v3, v%d offset:%d" % (ACC2 + i, RPITCH * i), "put")
    hooks = spread(a, sb, r.items, 15, 20)

    def h0_done():
        sb.drain("lgkm")
        a("ds_write_b32 v20, v22 offset:16")
    hooks[22] = h0_done
    hooks[25] = lambda: lds_wait(a, "L_hw", 21, 64, (1,))
    g2_stream(a, sb, lambda i: 8, 8, hooks)
    stamp(a)
    r = Rec(); put_tid(r, 1, L_H1); play(a, sb, r.items)
    sb.drain("lgkm")
    stamp(a)
    a("s_barrier")
    stamp_flush(a)


DESC = """.amdhsa_kernel %s
  .amdhsa_next_free_vgpr 256
  .amdhsa_next_free_sgpr 102
  .amdhsa_accum_offset 256
  .amdhsa_group_segment_fixed_size 0
  .amdhsa_kernarg_size 128
  .amdhsa_user_sgpr_count 2
  .amdhsa_user_sgpr_kernarg_segment_ptr 1
  .amdhsa_system_sgpr_workgroup_id_x 1
.end_amdhsa_kernel
"""


def kernel():
    a = Asm()
    a("""
    s_cmp_ge_u32 s2, 256
    s_cbranch_scc1 L_end
    s_load_dwordx16 s[8:23], s[0:1], 0
    s_load_dwordx16 s[24:39], s[0:1], 64
    v_lshrrev_b32 v2, 6, v0
    v_and_b32 v1, 63, v0
    v_readfirstlane_b32 s%d, v2
    v_and_b32 v0, 255, v0
    s_and_b32 s%d, s2, 7
    s_lshr_b32 s%d, s2, 3
    s_and_b32 s%d, s%d, 3
    s_cmp_lt_u32 s%d, 4
    s_cbranch_scc1 L_G
    """ % (S_W8, S_XCD, S_LOC, S_WV, S_W8, S_W8))
    h_waves(a)
    a("L_end:\ns_endpgm")
    g_waves(a)
    return a


def build():
    ref = open("cdna_kernels/%s.s.ref" % NAME).read().split("\n")
    head = [l for l in ref if l.startswith(";") and "@launch" not in l and "Override" not in l and "grid=ceil" not in l][:17]
    n = NAME + "_kernel"
    out = head + ["; @launch grid=(256,1,1) block=(512,1,1) lds=163840"]
    out += ['.amdgcn_target "amdgcn-amd-amdhsa--gfx950"', ".text", ".globl %s" % n, ".p2align 8", ".type %s,@function" % n, "%s:" % n]
    out += [kernel().finish(True), '.section .rodata,"a"', ".p2align 6", DESC % n]
    return "\n".join(out)


if __name__ == "__main__":
    for x in sys.argv[2:]:
        k, _, v = x.partition("=")
        OPT[k] = int(v) if v else True
    open(sys.argv[1], "w").write(build())
```

```python
import math
import sys
from contextlib import contextmanager
from asmlib import *
import parts as P
from parts import (NAME, P_U, P_ARE, P_AIM, P_BRE, P_BIM, P_CRE, P_CIM, P_LDT, P_DSK, P_WG, P_WU, P_WD, P_OUT, P_WS,
                   SX, SW, SWS, SO, S_WV, S_XCD, S_LOC, LOG2E, f2u, srd, unpack, wave_allsum, TCOPY, TCH, UCH, IDXC)

OPT = dict(stamps=False, probe=0)

WS_LNF, WS_WF, WS_HF, WS_YF = 0x1000, 0x2000, 0x8000, 0x28000
WS_STATS, WS_XNB, WS_Y, WS_WDF, WS_H = 0x80000, 0x100000, 0x300000, 0x500000, 0x700000
WS_STAMP = 0xE00000
XS, WSL, EXT = (0, 32768, 131072), (81920, 98304, 114688), 65536
L_TC = 114688
L_UI = L_TC + 2 * TCH
L_FLG = L_UI + 2 * UCH
L_CS = (L_FLG + 64 + 1023) & ~1023
RPITCH = 272
RWAVE = 32 * RPITCH
L_CRED, L_H1, L_G0, L_G1, L_YI, L_H0 = 0, 0, 4 * RWAVE, 8 * RWAVE, 12 * RWAVE, 114688
assert L_CS + 1024 <= 163840 and L_YI + 8192 <= L_TC and L_H0 + 4 * RWAVE <= L_FLG
S_W8, S_RB, S_FU, S_KX, S_KW, S_ORD, S_TAG, S_LN, S_P, S_LDT = 59, 64, 65, 66, 67, 68, 69, 70, 71, 72
S_R, S_CB, S_HO, S_CNT = 73, 74, 75, 76
S_M0 = 80
S_GRP = 89
V_STAMP = 7
SPIN = 1 << 18


class Rec:
    def __init__(self):
        self.items, self.cur = [], None

    def _add(self, op):
        (self.cur if self.cur is not None else self.items).append(op if self.cur is not None else [op])

    def __call__(self, text):
        for ln in text.split("\n"):
            ln = ln.strip()
            if ln and not ln.startswith(";"):
                self._add(("a", ln))

    def vm(self, text, tag=None): self._add(("vm", text, tag))
    def ds(self, text, tag=None): self._add(("ds", text, tag))
    def need(self, kind, tags): self._add(("need", kind, tags))
    def drain(self, *kinds): self._add(("drain", kinds))

    @contextmanager
    def group(self):
        self.cur = []
        yield
        self.items.append(self.cur)
        self.cur = None


def play(a, sb, items):
    for g in items:
        for op in g:
            if op[0] == "a": a(op[1])
            elif op[0] == "vm": sb.vm(op[1], op[2])
            elif op[0] == "ds": sb.ds(op[1], op[2])
            elif op[0] == "need": sb.need(op[1], op[2])
            else: sb.drain(*op[1])


def weave(main, side, lead=0, span=1.0):
    out, n, k = list(main[:lead]), len(main) - lead, 0
    for i, g in enumerate(main[lead:]):
        while k < len(side) and k * n * span <= i * len(side):
            out.append(side[k]); k += 1
        out.append(g)
    return out + list(side[k:])


def stamp(a):
    if OPT["stamps"]:
        a("s_memtime s[98:99]\ns_waitcnt lgkmcnt(0)\ns_lshl_b64 exec, 1, s100\nv_mov_b32 v%d, s98\ns_mov_b64 exec, -1\ns_add_u32 s100, s100, 1" % V_STAMP)


def stamp_init(a):
    if OPT["stamps"]:
        a("s_mov_b32 s100, 1\ns_memrealtime s[98:99]\ns_waitcnt lgkmcnt(0)\nv_mov_b32 v%d, 0\nv_writelane_b32 v%d, s98, 0" % (V_STAMP, V_STAMP))
        stamp(a)


def stamp_flush(a):
    if OPT["stamps"]:
        a("s_waitcnt vmcnt(0)")
        stamp(a)
        a("s_memrealtime s[98:99]\ns_waitcnt lgkmcnt(0)\nv_writelane_b32 v%d, s98, 63" % V_STAMP)
        a("""
        s_lshl_b32 s60, s2, 11
        s_lshl_b32 s61, s%d, 8
        s_add_u32 s60, s60, s61
        s_add_u32 s60, s60, 0x%x
        v_lshlrev_b32 v2, 2, v1
        buffer_store_dword v%d, v2, s[%d:%d], s60 offen
        """ % (S_W8, WS_STAMP, V_STAMP, SWS, SWS + 3))


def descriptors(a):
    a("s_load_dword s%d, s[%d:%d], 0" % (S_TAG, P_WS, P_WS + 1))
    srd(a, SX, P_U, 2048 * 512 * 2)
    srd(a, SWS, P_WS, 0x1000000)


def make_tag(a):
    a("s_waitcnt lgkmcnt(0)\ns_mul_i32 s%d, s%d, 0x9e3779b1\ns_add_u32 s%d, s%d, 0x7f4a7c15" % (S_TAG, S_TAG, S_TAG, S_TAG))


def post(r, vtag, soff):
    with r.group():
        r("s_mov_b64 exec, 1")
        r.vm("buffer_store_dword v%d, off, s[%d:%d], s%d sc1" % (vtag, SWS, SWS + 3, soff), "flag")
        r("s_mov_b64 exec, -1")


def spin(a, label, loads, regs):
    a("s_mov_b32 s%d, %d" % (S_CNT, SPIN))
    a("%s:" % label)
    a("v_cmp_ne_u32 vcc, s%d, v%d" % (S_TAG, regs[0]))
    for r in regs[1:]:
        a("v_cmp_ne_u32 s[62:63], s%d, v%d\ns_or_b64 vcc, vcc, s[62:63]" % (S_TAG, r))
    a("s_cbranch_vccz %s_ok" % label)
    for x in loads:
        a(x)
    a("s_sub_u32 s%d, s%d, 1\ns_waitcnt vmcnt(0)\ns_cbranch_scc0 %s\n%s_ok:" % (S_CNT, S_CNT, label, label))


def lds_wait(a, label, vaddr, T, groups):
    a("%s:" % label)
    for i, g in enumerate(groups):
        a("ds_read_b128 %s, v%d offset:%d" % (vr(T + 4 * i, 4), vaddr, 16 * g))
    a("s_waitcnt lgkmcnt(0)")
    for i in range(1, 4 * len(groups)):
        a("v_and_b32 v%d, v%d, v%d" % (T, T, T + i))
    a("v_cmp_eq_u32 vcc, 0, v%d\ns_cbranch_vccnz %s" % (T, label))


def roles(a):
    a("""
    s_and_b32 s60, s%d, 1
    s_lshl_b32 s60, s60, 2
    s_and_b32 s61, s%d, 3
    s_add_u32 s%d, s60, s61
    s_lshr_b32 s60, s%d, 1
    s_mul_i32 s60, s60, 7
    s_lshr_b32 s61, s%d, 2
    s_add_u32 s%d, s60, s61
    """ % (S_XCD, S_LOC, S_RB, S_XCD, S_LOC, S_FU))


def ln_block(a):
    a("""
    s_and_b32 s60, s%d, 1
    s_lshl_b32 s60, s60, 7
    s_lshr_b32 s61, s%d, 1
    s_lshl_b32 s61, s61, 5
    s_add_u32 s60, s60, s61
    s_add_u32 s%d, s60, s%d
    """ % (S_XCD, S_XCD, S_LN, S_LOC))


RA, RB, RB2, SEL, CS = 10, 12, 16, 20, 24
MB, MA = 28, 40
SETS, FA7 = (48, 72), 96
ACC = 128
VHS = 38


def ln_part1(a, sb, V):
    F, T, S, D = (V + 10, V + 18), V + 26, (V + 34, V + 36), V + 38
    for i in range(2):
        unpack(a, F[i], V + 4 * i, 4)
    for i in range(2):
        f, t = F[i], T + 4 * i
        a("v_pk_add_f32 %s, %s, %s" % (vr(t, 2), vr(f, 2), vr(f + 2, 2)))
        a("v_pk_add_f32 %s, %s, %s" % (vr(t + 2, 2), vr(f + 4, 2), vr(f + 6, 2)))
    for i in range(2):
        t = T + 4 * i
        a("v_pk_add_f32 %s, %s, %s" % (vr(t, 2), vr(t, 2), vr(t + 2, 2)))
    for i in range(2):
        a("v_add_f32 v%d, v%d, v%d" % (S[i], T + 4 * i, T + 4 * i + 1))
    wave_allsum(a, [S[0], S[1]], [T, T + 1])
    for i in range(2):
        a("v_mul_f32 v%d, 0x%x, v%d" % (S[i], f2u(1.0 / 512), S[i]))
    for i in range(2):
        for j in range(4):
            a("v_pk_add_f32 %s, %s, %s op_sel_hi:[1,0] neg_lo:[0,1] neg_hi:[0,1]" % (vr(D + 2 * j, 2), vr(F[i] + 2 * j, 2), vr(S[i], 2)))
        t = T + 4 * i
        a("v_pk_mul_f32 %s, %s, %s" % (vr(t, 2), vr(D, 2), vr(D, 2)))
        a("v_pk_mul_f32 %s, %s, %s" % (vr(t + 2, 2), vr(D + 2, 2), vr(D + 2, 2)))
        a("v_pk_fma_f32 %s, %s, %s, %s" % (vr(t, 2), vr(D + 4, 2), vr(D + 4, 2), vr(t, 2)))
        a("v_pk_fma_f32 %s, %s, %s, %s" % (vr(t + 2, 2), vr(D + 6, 2), vr(D + 6, 2), vr(t + 2, 2)))
        a("v_pk_add_f32 %s, %s, %s" % (vr(t, 2), vr(t, 2), vr(t + 2, 2)))
        a("v_add_f32 v%d, v%d, v%d" % (S[i] + 1, t, t + 1))
    wave_allsum(a, [S[0] + 1, S[1] + 1], [T, T + 1])
    for i in range(2):
        a("v_mul_f32 v%d, 0x%x, v%d" % (S[i] + 1, f2u(1.0 / 512), S[i] + 1))
    for i in range(2):
        a("v_cvt_pk_bf16_f32 v%d, v%d, v%d" % (T + i, S[i], S[i] + 1))
    for i in range(2):
        a("v_lshlrev_b32 v%d, 16, v%d" % (S[i], T + i))
        a("v_and_b32 v%d, 0xffff0000, v%d" % (S[i] + 1, T + i))
    for i in range(2):
        a("v_add_f32 v%d, 0x%x, v%d" % (S[i] + 1, f2u(1e-5), S[i] + 1))
    a("v_cvt_pk_bf16_f32 v%d, v%d, v%d" % (T, S[0] + 1, S[1] + 1))
    a("v_lshlrev_b32 v%d, 16, v%d" % (T + 1, T))
    a("v_and_b32 v%d, 0xffff0000, v%d" % (T + 2, T))
    a("v_sqrt_f32 v%d, v%d" % (T + 1, T + 1))
    a("v_sqrt_f32 v%d, v%d" % (T + 2, T + 2))
    a("v_cvt_pk_bf16_f32 v%d, v%d, v%d" % (T, T + 1, T + 2))
    a("v_lshlrev_b32 v%d, 16, v%d" % (T + 1, T))
    a("v_and_b32 v%d, 0xffff0000, v%d" % (T + 2, T))
    a("v_rcp_f32 v%d, v%d" % (S[0] + 1, T + 1))
    a("v_rcp_f32 v%d, v%d" % (S[1] + 1, T + 2))
    for i in range(2):
        a("v_cvt_pk_bf16_f32 v%d, v%d, v%d" % (T + 4 + 2 * i, S[i], S[i]))
        a("v_mov_b32 v%d, v%d" % (T + 5 + 2 * i, S[i] + 1))
    a("""
    s_lshl_b32 s60, s%d, 6
    s_lshl_b32 s61, s%d, 4
    s_add_u32 s60, s60, s61
    s_add_u32 s60, s60, 0x%x
    s_mov_b64 exec, 1
    """ % (S_LN, S_WV, WS_STATS))
    sb.vm("buffer_store_dwordx4 %s, off, s[%d:%d], s60 sc1" % (vr(T + 4, 4), SWS, SWS + 3), "st")
    a("s_mov_b64 exec, -1")
    a("s_mul_i32 s60, s%d, %d" % (S_WV, -2 * 1088))
    a("s_add_u32 s60, s60, %d" % (EXT + 6 * 1088))
    a("v_add_u32 v%d, s60, v%d" % (V + 9, V + 8))
    for i in range(2):
        for j in range(4):
            a("v_pk_add_f32 %s, %s, %s op_sel_hi:[1,0] neg_lo:[0,1] neg_hi:[0,1]" % (vr(D + 2 * j, 2), vr(F[i] + 2 * j, 2), vr(S[i], 2)))
        for j in range(4):
            a("v_cvt_pk_bf16_f32 v%d, v%d, v%d" % (T + j, D + 2 * j, D + 2 * j + 1))
        unpack(a, D, T, 4)
        for j in range(4):
            a("v_pk_mul_f32 %s, %s, %s op_sel:[0,1]" % (vr(D + 2 * j, 2), vr(D + 2 * j, 2), vr(S[i], 2)))
        for j in range(4):
            a("v_cvt_pk_bf16_f32 v%d, v%d, v%d" % (V + 4 * i + j, D + 2 * j, D + 2 * j + 1))
        sb.ds("ds_write_b128 v%d, %s offset:%d" % (V + 9, vr(V + 4 * i, 4), (1 - i) * 1088), "w")


def ln_part2(VA, VO, D):
    rd = [("ds", "ds_read_b64_tr_b16 %s, v%d offset:%d" % (vr(D + 4 * i + 2 * e, 2), VA, e * 4 * 1088 + i * 128), "ln")
          for i in range(2) for e in range(2)]
    st = [("vm", "buffer_store_dwordx4 %s, v%d, s[%d:%d], s61 offen offset:%d sc1" % (vr(D + 4 * i, 4), VO, SWS, SWS + 3, i * 1024), "st")
          for i in range(2)]
    return rd, st


def g_addresses(a):
    a("""
    v_bfe_u32 v2, v1, 4, 1
    v_lshrrev_b32 v3, 5, v1
    v_bfe_u32 v4, v1, 2, 2
    v_lshl_add_u32 v5, v3, 3, v4
    v_lshlrev_b32 v5, 7, v5
    v_lshl_add_u32 v5, v2, 13, v5
    v_lshrrev_b32 v6, 1, v4
    v_lshl_add_u32 v6, v2, 1, v6
    s_and_b32 s60, s%d, 1
    s_lshl_b32 s60, s60, 1
    s_lshr_b32 s61, s%d, 1
    s_or_b32 s60, s60, s61
    v_xor_b32 v6, s60, v6
    v_lshl_add_u32 v5, v6, 5, v5
    v_and_b32 v6, 3, v1
    v_lshl_add_u32 v5, v6, 3, v5
    v_add_u32 v%d, %d, v5
    v_xor_b32 v%d, 32, v%d
    v_mul_u32_u24 v4, 1088, v4
    v_lshl_add_u32 v4, v6, 3, v4
    v_lshrrev_b32 v6, 4, v1
    v_lshl_add_u32 v4, v6, 5, v4
    s_lshl_b32 s60, s%d, 8
    s_add_u32 s60, s60, %d
    v_add_u32 v9, s60, v4
    v_and_b32 v5, 31, v1
    v_bfe_u32 v4, v1, 1, 3
    v_xor_b32 v4, v3, v4
    v_lshlrev_b32 v4, 4, v4
    v_lshl_add_u32 v4, v5, 7, v4
    s_lshl_b32 s60, s61, 14
    v_add_u32 v%d, s60, v4
    """ % (S_WV, S_WV, RA, WSL[0], RA + 1, RA, S_WV, EXT, RB))
    for s in range(1, 4):
        a("v_xor_b32 v%d, %d, v%d" % (RB + s, 32 * s, RB))
    for s in range(4):
        a("v_add_u32 v%d, %d, v%d" % (RB2 + s, XS[2], RB + s))
    a("""
    v_bfe_u32 v4, v1, 2, 1
    v_cmp_eq_u32 vcc, v2, v4
    v_mov_b32 v4, 0x3f803f80
    v_cndmask_b32 v%d, 0, v4, vcc
    s_lshl_b32 s60, s61, 10
    v_add_u32 v%d, s60, v8
    v_xor_b32 v%d, 0x400, v%d
    """ % (SEL, VHS, VHS + 1, VHS))
    for i in range(1, 4):
        a("v_mov_b32 v%d, v%d" % (SEL + i, SEL))
    for r in (MB + 1, MB + 3, MB + 5, MB + 7, MB + 8, MB + 9, MA + 1, MA + 2, MA + 3, MA + 5, MA + 6, MA + 7):
        a("v_mov_b32 v%d, 0" % r)


def rd_a(stage, s, dst, tag):
    return [("ds", "ds_read_b64_tr_b16 %s, v%d offset:%d" % (vr(dst + 4 * t + 2 * e, 2), RA + t, (stage % 3) * 16384 + s * 2048 + e * 512), tag)
            for t in range(2) for e in range(2)]


def rd_b(stage, s, b, dst, tag):
    slot = stage % 3
    return ("ds", "ds_read_b128 %s, v%d offset:%d" % (vr(dst, 4), (RB2 if slot == 2 else RB) + s, (slot & 1) * 32768 + b * 4096), tag)


def mm(b, t, fa, fb, first=False):
    c = ACC + 16 * (2 * b + t)
    return "v_mfma_f32_32x32x16_bf16 %s, %s, %s, %s" % (vr(c, 16), vr(fa, 4), vr(fb, 4), "0" if first else vr(c, 16))


def side(fa, first=False):
    return "v_mfma_f32_16x16x32_bf16 %s, %s, %s, %s" % (vr(CS, 4), vr(SEL, 4), vr(fa, 4), "0" if first else vr(CS, 4))


def gaps(a, sb, seq, fill, cap):
    fill, i = list(fill), 0
    for x in seq:
        if isinstance(x, tuple):
            play(a, sb, [[x]])
            continue
        a(x)
        n = cap[i] if i < len(cap) else 0
        i += 1
        while n > 0 and fill:
            op = fill.pop(0)
            play(a, sb, [[op]])
            n -= op[0] != "need"
    return fill


def ops(text):
    return [("a", x.strip()) for x in text.strip().split("\n")]


def h_tile(b, t):
    c = ACC + 16 * (2 * b + t)
    L = [("a", "v_max_f32 v%d, 0, v%d" % (c + i, c + i)) for i in range(8)]
    L += [("a", "v_mul_f32 v%d, v%d, v%d" % (c + i, c + i, c + 8 + i)) for i in range(8)]
    L += [("a", "v_cvt_pk_bf16_f32 v%d, v%d, v%d" % (c + i, c + 2 * i, c + 2 * i + 1)) for i in range(4)]
    L += [("vm", "buffer_store_dwordx4 %s, v%d, s[%d:%d], s%d offen sc1" % (vr(c, 4), VHS + t, SWS, SWS + 3, S_HO), "st")]
    if t:
        L += [("a", "s_add_u32 s%d, s%d, %d" % (S_HO, S_HO, 112 * 1024))]
    return L


def g_main(a, sb, ln_rd, ln_st):
    X, Y = SETS
    play(a, sb, [rd_a(0, 0, X, "f") + [rd_b(0, 0, b, X + 8 + 4 * b, "f") for b in range(4)] + ln_rd])
    for st in range(7):
        for s in range(4):
            f, g = SETS[s & 1], SETS[(s + 1) & 1]
            sb.need("lgkm", "f")
            extra = []
            if s == 3:
                if st == 1:
                    sb.drain("vm")
                a("s_barrier")
                stamp(a)
                if st == 5:
                    extra = [("a", "v_and_b32 v2, 31, v1"), ("a", "v_lshlrev_b32 v2, 3, v2")]
                    extra += [("vm", "buffer_load_dword v%d, v2, s[%d:%d], s63 offen offset:%d sc1" % (MB + 2 * b, SWS, SWS + 3, 256 * b), "m") for b in range(4)]
            if (st, s) == (0, 1):
                extra = [("need", "lgkm", "ln")] + ln_st + ops("""
                s_lshl_b32 s60, s%d, 11
                s_lshr_b32 s61, s%d, 1
                s_lshl_b32 s62, s61, 10
                s_add_u32 s60, s60, s62
                s_add_u32 s63, s60, 0x%x
                s_lshl_b32 s60, s%d, 3
                s_lshl_b32 s61, s61, 2
                s_add_u32 s60, s60, s61
                s_mul_i32 s60, s60, 112""" % (S_RB, S_WV, WS_STATS, S_RB))
            if (st, s) == (0, 2):
                extra = ops("""
                s_lshl_b32 s61, s%d, 2
                s_add_u32 s60, s60, s61
                s_and_b32 s61, s%d, 1
                s_lshl_b32 s61, s61, 1
                s_add_u32 s60, s60, s61
                s_lshl_b32 s60, s60, 10
                s_add_u32 s%d, s60, 0x%x
                s_lshl_b32 s60, s%d, 8
                s_add_u32 s60, s60, %d
                v_lshl_add_u32 v9, v1, 2, s60
                v_xor_b32 v6, 0x200, v9""" % (S_FU, S_WV, S_HO, WS_H, S_WV, L_CS))
            first = st == 0 and s == 0
            mf = [mm(b, t, f + 4 * t, f + 8 + 4 * b, first) for b in range(4) for t in range(2)]
            mf.insert(5, side(f, first))
            if (st, s) == (6, 3):
                nxt = [x for q in range(4) for x in rd_a(7, q, FA7 + 8 * q, ("a", q))]
                nxt += [rd_b(7, q, 0, X + 4 * q, ("b", 0, q)) for q in range(4)]
                left = gaps(a, sb, mf, nxt, [3, 3, 3, 3, 2, 0, 2, 2, 2])
            else:
                ns, nq = (st, s + 1) if s < 3 else (st + 1, 0)
                nxt = rd_a(ns, nq, g, "f") + [rd_b(ns, nq, b, g + 8 + 4 * b, "f") for b in range(4)]
                left = gaps(a, sb, mf, nxt + extra, [2, 2, 2, 2, 4, 0, 4, 4, 4])
            assert not left, (st, s, left)
    fb = lambda b: (X, Y)[b & 1]
    seq = []
    for q in range(4):
        seq += [("need", "lgkm", [("a", q)]), side(FA7 + 8 * q)]
    main = lambda b: [x for q in range(4) for x in (("need", "lgkm", [("b", b, q)]), mm(b, 0, FA7 + 8 * q, fb(b) + 4 * q), mm(b, 1, FA7 + 8 * q + 4, fb(b) + 4 * q))]
    mean = lambda b: [mm(b, 0, MA, MB + 2 * b), mm(b, 1, MA + 4, MB + 2 * b)]
    nb = lambda b: [rd_b(7, q, b, fb(b) + 4 * q, ("b", b, q)) for q in range(4)]

    def split(c, dst):
        return ops("""
        v_cvt_pk_bf16_f32 v2, -v%d, -v%d
        v_and_b32 v3, 0xffff0000, v2
        v_add_f32 v5, v%d, v3
        v_cvt_pk_bf16_f32 v3, -v5, -v5
        v_and_b32 v4, 0xffff0000, v3
        v_add_f32 v5, v5, v4
        v_cvt_pk_bf16_f32 v4, -v5, 0
        v_alignbit_b32 v2, v3, v2, 16
        v_cndmask_b32 v%d, v4, v2, vcc""" % (c, c, c, dst))
    fill = nb(1) + [("a", "v_cmp_gt_u32 vcc, 32, v1"), ("ds", "ds_write_b32 v9, v%d" % CS, "cw")] + split(CS, MA)
    fill += [("need", "lgkm", "cw"), ("a", "s_barrier"), ("ds", "ds_read_b32 v%d, v6" % (CS + 1), "cr")]
    left = gaps(a, sb, seq + main(0), fill, [0, 0, 0, 0, 2, 2, 2, 4, 4, 1, 2, 0])
    assert not left, left
    stamp(a)
    m1 = main(1)
    fill = [("need", "lgkm", "cr")] + split(CS + 1, MA + 4) + nb(2) + h_tile(0, 0) + h_tile(0, 1)
    left = gaps(a, sb, m1[:6] + [("need", "vm", "m")] + mean(0) + m1[6:] + mean(1), fill, [0, 5, 4, 0, 2, 2, 0, 0, 5, 5, 5, 5])
    left = gaps(a, sb, main(2) + mean(2), nb(3) + left + h_tile(1, 0) + h_tile(1, 1), [5] * 10)
    sb.need("lgkm", [("b", 3, 3)])
    a("s_barrier")
    stamp(a)
    left = gaps(a, sb, main(3) + mean(3), left + h_tile(2, 0) + h_tile(2, 1), [5] * 10)
    play(a, sb, [left + h_tile(3, 0) + h_tile(3, 1)])


def spare_issue(a):
    srd(a, SW, P_WD, 1792 * 512 * 2)
    a("""
    s_lshl_b32 s60, s%d, 2
    s_add_u32 s60, s60, s%d
    s_sub_u32 s%d, s60, 28
    s_cmp_ge_u32 s%d, 28
    s_cselect_b32 s%d, 0, s%d
    s_lshl_b32 s60, s%d, 16
    s_lshl_b32 s61, s%d, 14
    s_add_u32 s60, s60, s61
    s_mul_i32 s77, s%d, %d
    s_cmp_eq_u32 s%d, 3
    s_cselect_b32 s77, %d, s77
    """ % (S_XCD, S_LOC, S_FU, S_FU, SW + 2, SW + 2, S_FU, S_WV, S_WV, 16 * 1088, S_WV, WSL[0]))
    for i in range(16):
        a("s_add_u32 m0, s77, %d" % (i * 1088))
        a("s_add_u32 s61, s60, %d" % (i * 1024))
        a("buffer_load_dwordx4 v8, s[%d:%d], s61 offen lds" % (SW, SW + 3))


def spare_job(a, ln_rd, ln_st):
    sb = Sb(a)
    play(a, sb, [ln_rd, [("need", "lgkm", "ln")], ln_st])
    a("s_barrier")
    a("""
    v_bfe_u32 v2, v1, 2, 2
    v_lshrrev_b32 v3, 5, v1
    v_lshl_add_u32 v2, v3, 2, v2
    v_mul_u32_u24 v2, 1088, v2
    v_and_b32 v3, 3, v1
    v_lshl_add_u32 v2, v3, 3, v2
    v_bfe_u32 v3, v1, 4, 1
    v_lshl_add_u32 v2, v3, 5, v2
    v_add_u32 v2, s77, v2
    s_lshl_b32 s60, s%d, 2
    s_add_u32 s60, s60, s%d
    s_lshl_b32 s63, s60, 6
    s_add_u32 s63, s63, 0x%x
    s_lshl_b32 s60, s60, 10
    s_add_u32 s60, s60, 0x%x
    v_mov_b32 v3, s%d
    s_waitcnt vmcnt(0)
    s_barrier
    s_cmp_ge_u32 s%d, 28
    s_cbranch_scc1 L_sp_idle
    """ % (S_FU, S_WV, WS_WF, WS_WDF, S_TAG, S_FU))
    sb.q["vm"] = []
    R = 64

    def put(k):
        sb.need("lgkm", "t%d" % k)
        a("s_add_u32 s61, s60, %d" % (k * 112 * 1024))
        sb.vm("buffer_store_dwordx4 %s, v8, s[%d:%d], s61 offen sc1" % (vr(R + 4 * k, 4), SWS, SWS + 3), "st")
    for dt in range(16):
        for e in range(2):
            sb.ds("ds_read_b64_tr_b16 %s, v2 offset:%d" % (vr(R + 4 * dt + 2 * e, 2), e * 8 * 1088 + 64 * dt), "t%d" % dt)
        if dt >= 3:
            put(dt - 3)
    for k in range(13, 16):
        put(k)
    sb.drain("vm")
    r = Rec(); post(r, 3, 63); play(a, sb, r.items)
    a("L_sp_idle:")
    for _ in range(7):
        a("s_barrier")


WD, ACC2, RING = 144, 80, 32
VH, VW = 28, 30


def g2_setup(a):
    a("""
    s_lshl_b32 s60, s%d, 2
    s_lshr_b32 s61, s%d, 3
    s_add_u32 s%d, s60, s61
    s_and_b32 s%d, s%d, 7
    s_mul_i32 s60, s%d, 14
    s_mul_i32 s61, s%d, 224
    s_add_u32 s61, s61, s60
    s_lshl_b32 s61, s61, 10
    s_add_u32 s61, s61, 0x%x
    v_lshl_add_u32 v%d, v1, 4, s61
    v_add_u32 v%d, %d, v%d
    s_mul_i32 s61, s%d, 224
    s_add_u32 s61, s61, s60
    s_lshl_b32 s61, s61, 10
    s_add_u32 s61, s61, 0x%x
    v_lshl_add_u32 v%d, v1, 4, s61
    v_add_u32 v%d, %d, v%d
    s_lshl_b32 s60, s%d, 11
    """ % (S_XCD, S_LOC, S_R, S_CB, S_LOC, S_W8, S_R, WS_H, VH, VH + 1, 112 * 1024, VH,
           S_CB, WS_WDF, VW, VW + 1, 112 * 1024, VW, S_CB))
    for g in range(7):
        a("s_add_u32 s61, s60, %d\ns_sub_u32 s62, s61, %d\ns_cselect_b32 s%d, s61, s62" % (2048 * g, 7 * 2048, S_GRP + g))


def wd_loads():
    return ["buffer_load_dwordx4 %s, v%d, s[%d:%d], s%d offen offset:%d sc1" % (vr(WD + 8 * i + 4 * dt, 4), VW + dt, SWS, SWS + 3, S_GRP + (i >> 1), 1024 * (i & 1))
            for i in range(14) for dt in range(2)]


def h_flag_addr(a, v):
    a("""
    s_lshr_b32 s60, s%d, 1
    s_mul_i32 s60, s60, 56
    s_mul_i32 s61, s%d, 7
    s_add_u32 s60, s60, s61
    v_min_u32 v%d, 6, v1
    v_add_u32 v%d, s60, v%d
    v_lshlrev_b32 v%d, 7, v%d
    v_add_u32 v%d, 0x%x, v%d
    """ % (S_R, S_W8, v, v, v, v, v, v, WS_HF, v))


def g2_stream(a, sb, depth, nslot, hooks):
    def ld(i):
        tb, k = divmod(i, 14)
        sb.vm("buffer_load_dwordx4 %s, v%d, s[%d:%d], s%d offen offset:%d sc1" %
              (vr(RING + 4 * (i % nslot), 4), VH + tb, SWS, SWS + 3, S_GRP + (k >> 1), 1024 * (k & 1)), ("h", i))
    nxt = 0
    for i in range(28):
        while nxt < 28 and nxt < i + depth(i) and nxt < i + nslot:
            ld(nxt); nxt += 1
        tb, k = divmod(i, 14)
        sb.need("vm", [("h", i)])
        for dt in range(2):
            c = ACC2 + 32 * tb + 16 * dt
            a("v_mfma_f32_32x32x16_bf16 %s, %s, %s, %s" % (vr(c, 16), vr(RING + 4 * (i % nslot), 4), vr(WD + 8 * k + 4 * dt, 4), vr(c, 16) if k else "0"))
        if i in hooks:
            hooks[i]()


def put_tid(r, tb, region):
    base = min(region, 65536 - 4 * RWAVE)
    r("s_mul_i32 s60, s%d, %d\ns_add_u32 m0, s60, %d" % (S_WV, RWAVE, base))
    for i in range(32):
        r.ds("ds_write_addtid_b32 v%d offset:%d" % (ACC2 + 32 * tb + i, region - base + RPITCH * i), "put")


def spread(a, sb, items, first, last):
    n = last - first + 1
    return {first + j: (lambda part=items[j * len(items) // n:(j + 1) * len(items) // n]: play(a, sb, part)) for j in range(n)}


SD = 8


def g_tail(a, sb):
    g2_setup(a)
    wl = wd_loads()
    for x in wl[:8]:
        sb.vm(x, "wd")
    a("""
    s_lshl_b32 s60, s%d, 1
    s_lshr_b32 s61, s%d, 1
    s_add_u32 s60, s60, s61
    s_mul_i32 s60, s60, 56
    s_lshl_b32 s61, s%d, 1
    s_add_u32 s60, s60, s61
    s_and_b32 s61, s%d, 1
    s_add_u32 s60, s60, s61
    s_lshl_b32 s60, s60, 7
    s_add_u32 s77, s60, 0x%x
    v_mov_b32 v6, s%d
    """ % (S_RB, S_WV, S_FU, S_WV, WS_HF, S_TAG))
    srd(a, SO, P_OUT, 2048 * 512 * 2)
    V = SD
    a("""
    v_bfe_u32 v2, v1, 3, 1
    v_bfe_u32 v3, v1, 4, 1
    v_lshl_add_u32 v2, v3, 2, v2
    v_lshrrev_b32 v3, 5, v1
    v_lshl_add_u32 v2, v3, 1, v2
    s_lshl_b32 s60, s%d, 6
    s_lshl_b32 s61, s%d, 3
    s_add_u32 s60, s60, s61
    v_add_u32 v3, s60, v2
    v_and_b32 v4, 7, v1
    v_lshlrev_b32 v4, 4, v4
    s_lshl_b32 s60, s%d, 7
    v_add_u32 v4, s60, v4
    v_lshl_add_u32 v%d, v3, 10, v4
    v_lshlrev_b32 v5, 3, v3
    """ % (S_R, S_WV, S_CB, V + 16))
    a("""
    v_and_b32 v3, 3, v2
    s_lshl_b32 s60, s%d, 2
    v_add_u32 v3, s60, v3
    v_bfe_u32 v64, v1, 2, 1
    v_lshl_add_u32 v3, v64, 4, v3
    v_mul_u32_u24 v3, %d, v3
    v_lshrrev_b32 v64, 2, v2
    v_lshl_add_u32 v3, v64, 7, v3
    v_and_b32 v64, 3, v1
    v_lshl_add_u32 v%d, v64, 5, v3
    s_lshl_b32 s60, s%d, 1
    v_lshrrev_b32 v3, 2, v2
    v_add_u32 v3, s60, v3
    v_and_b32 v64, 7, v1
    v_xor_b32 v3, v3, v64
    v_lshlrev_b32 v3, 4, v3
    v_lshl_add_u32 v3, v64, 10, v3
    v_and_b32 v64, 3, v2
    v_lshl_add_u32 v3, v64, 2, v3
    v_add_u32 v%d, %d, v3
    """ % (S_WV, RPITCH, V + 17, S_WV, V + 18, L_YI))
    h_flag_addr(a, 27)
    a("s_cmp_lt_u32 s%d, 28\ns_cselect_b64 s[78:79], 1, 0" % S_LOC)
    sb.need("vm", "st")
    stamp(a)
    a("s_mov_b64 exec, s[78:79]")
    sb.vm("buffer_store_dword v6, off, s[%d:%d], s77 sc1" % (SWS, SWS + 3), "flag")
    a("s_mov_b64 exec, -1")
    for x in wl[8:]:
        sb.vm(x, "wd")
    a("s_mov_b32 s60, 32768\ns_mov_b32 s61, 0x%x" % WS_STATS)
    sb.vm("buffer_load_dwordx4 %s, v%d, s[%d:%d], 0 offen" % (vr(V, 4), V + 16, SX, SX + 3), "side")
    sb.vm("buffer_load_dwordx4 %s, v%d, s[%d:%d], s60 offen" % (vr(V + 4, 4), V + 16, SX, SX + 3), "side")
    sb.vm("buffer_load_dwordx2 %s, v5, s[%d:%d], s61 offen sc1" % (vr(V + 8, 2), SWS, SWS + 3), "side")
    sb.vm("buffer_load_dwordx2 %s, v5, s[%d:%d], s61 offen offset:256 sc1" % (vr(V + 10, 2), SWS, SWS + 3), "side")
    sb.vm("global_load_dwordx4 %s, v4, s[%d:%d]" % (vr(V + 12, 4), P_DSK, P_DSK + 1), "side")
    poll = "buffer_load_dword v2, v27, s[%d:%d], 0 offen sc1" % (SWS, SWS + 3)
    sb.vm(poll, "poll")
    a("""
    s_lshr_b32 s60, s%d, 3
    s_lshl_b32 s60, s60, 8
    s_lshl_b32 s61, s%d, 5
    s_add_u32 s60, s60, s61
    v_and_b32 v5, 31, v1
    v_add_u32 v5, s60, v5
    v_lshlrev_b32 v5, 5, v5
    v_add_u32 v5, 0x%x, v5
    v_lshrrev_b32 v3, 4, v1
    v_and_b32 v4, 15, v1
    s_lshl_b32 s60, s%d, 1
    v_xor_b32 v4, s60, v4
    v_lshlrev_b32 v4, 4, v4
    v_lshl_add_u32 v3, v3, 13, v4
    v_xor_b32 v4, 16, v3
    v_add_u32 v4, 0x8000, v4
    s_lshl_b32 s60, s%d, 18
    s_lshl_b32 s61, s%d, 16
    s_add_u32 s60, s60, s61
    s_lshl_b32 s61, s%d, 8
    s_add_u32 s60, s60, s61
    s_add_u32 s77, s60, 0x%x
    s_lshl_b32 s61, s%d, 11
    s_add_u32 s61, s61, %d
    v_lshl_add_u32 v6, v1, 4, s61
    """ % (S_R, S_CB, WS_YF, S_WV, S_CB, S_WV, S_R, WS_Y, S_WV, L_YI))
    sb.drain("vm")
    B = (64, 72)
    for tb in range(2):
        X, st = ACC2, V + 8 + 2 * tb
        unpack(a, X, V + 4 * tb, 4)
        unpack(a, B[tb], V + 12, 4)
        a("v_and_b32 v%d, 0xffff0000, v%d" % (st, st))
        for j in range(8):
            a("v_mul_f32 v%d, v%d, v%d" % (B[tb] + j, B[tb] + j, st + 1))
            a("v_sub_f32 v%d, v%d, v%d" % (X + 8, X + j, st))
            a("v_fma_f32 v%d, v%d, v%d, v%d" % (B[tb] + j, B[tb] + j, X + 8, X + j))
        a("v_mul_f32 v%d, v%d, v%d" % (st + 1, st + 1, st + 1))
    spin(a, "L_gh", [poll], [2])
    stamp(a)
    ypoll = "buffer_load_dword v2, v5, s[%d:%d], 0 offen sc1" % (SWS, SWS + 3)
    r = Rec(); put_tid(r, 0, L_G0)
    hooks = spread(a, sb, r.items, 15, 22)
    hooks[24] = lambda: sb.vm(ypoll, "ypoll")
    g2_stream(a, sb, lambda i: 8, 8, hooks)
    stamp(a)
    sb.need("vm", "ypoll")
    spin(a, "L_gy", [ypoll], [2])
    YR = V
    sb.vm("buffer_load_dwordx4 %s, v3, s[%d:%d], s77 offen sc1" % (vr(YR, 4), SWS, SWS + 3), "y")
    sb.vm("buffer_load_dwordx4 %s, v4, s[%d:%d], s77 offen sc1" % (vr(YR + 4, 4), SWS, SWS + 3), "y")
    a("s_nop 4")
    r = Rec(); put_tid(r, 1, L_G1); play(a, sb, r.items)
    a("s_lshl_b32 s60, s%d, 2\ns_add_u32 s60, s60, %d\nv_mov_b32 v3, s60\nv_mov_b32 v4, %d\nv_mov_b32 v5, -1" % (S_WV, L_FLG, L_FLG))
    sb.need("vm", "y")
    sb.ds("ds_write_b128 v6, %s" % vr(YR, 4), "put")
    sb.ds("ds_write_b128 v6, %s offset:1024" % vr(YR + 4, 4), "put")
    sb.drain("lgkm")
    a("ds_write_b32 v3, v5 offset:32")
    stamp(a)
    lds_wait(a, "L_gw", 4, RING, (1, 2))
    stamp(a)
    T = WD

    def reads(region, dst, tag, vaddr):
        for q in range(4):
            for h in range(2):
                sb.ds("ds_read_b128 %s, v%d offset:%d" % (vr(dst + 8 * q + 4 * h, 4), vaddr, region + RWAVE * q + 16 * h), tag)

    def fold(dst, n):
        while n > 1:
            n //= 2
            for q in range(n):
                for j in range(8):
                    a("v_add_f32 v%d, v%d, v%d" % (dst + 8 * q + j, dst + 8 * q + j, dst + 8 * (q + n) + j))
    a("v_add_u32 v2, %d, v%d\nv_add_u32 v3, %d, v%d" % (L_G1, V + 17, L_H0, V + 17))
    for tb in range(2):
        for i in range(4):
            sb.ds("ds_read_b32 v%d, v%d offset:%d" % (RING + 4 * tb + i, V + 18, 256 * i + 128 * tb), "yr")
    reads(L_G0, T, "p0", V + 17)
    sb.need("lgkm", "yr")
    reads(0, T + 32, "p1", 3)
    for tb in range(2):
        unpack(a, RING + 8, RING + 4 * tb, 4)
        for j in range(8):
            a("v_add_f32 v%d, v%d, v%d" % (B[tb] + j, B[tb] + j, RING + 8 + j))
    sb.need("lgkm", "p0")
    reads(0, T + 64, "p2", 2)
    sb.need("lgkm", "p1")
    fold(T, 8)
    for j in range(8):
        a("v_fma_f32 v%d, v%d, v%d, v%d" % (T + j, T + j, V + 9, B[0] + j))
    for j in range(4):
        a("v_cvt_pk_bf16_f32 v%d, v%d, v%d" % (T + 8 + j, T + 2 * j, T + 2 * j + 1))
    sb.vm("buffer_store_dwordx4 %s, v%d, s[%d:%d], 0 offen" % (vr(T + 8, 4), V + 16, SO, SO + 3), "st")
    sb.need("lgkm", "p2")
    fold(T + 64, 4)
    for j in range(8):
        a("v_fma_f32 v%d, v%d, v%d, v%d" % (B[1] + j, T + 64 + j, V + 11, B[1] + j))
    a("s_mov_b32 s60, 32768")
    stamp(a)
    a("s_barrier")
    stamp(a)
    for q in range(4):
        for h in range(2):
            sb.ds("ds_read_b128 %s, v%d offset:%d" % (vr(T + 16 + 8 * q + 4 * h, 4), V + 17, L_H1 + RWAVE * q + 16 * h), "q%d" % (q >> 1))
    for q in (0, 2):
        sb.need("lgkm", "q%d" % (q >> 1))
        for j in range(4):
            c = T + 16 + 8 * q + 2 * j
            a("v_pk_add_f32 %s, %s, %s" % (vr(c, 2), vr(c, 2), vr(c + 8, 2)))
    for j in range(4):
        c = T + 16 + 2 * j
        a("v_pk_add_f32 %s, %s, %s" % (vr(c, 2), vr(c, 2), vr(c + 16, 2)))
    for j in range(4):
        c = T + 16 + 2 * j
        a("v_pk_fma_f32 %s, %s, %s, %s op_sel:[0,1,0]" % (vr(c, 2), vr(c, 2), vr(V + 10, 2), vr(B[1] + 2 * j, 2)))
    for j in range(4):
        a("v_cvt_pk_bf16_f32 v%d, v%d, v%d" % (T + 64 + j, T + 16 + 2 * j, T + 17 + 2 * j))
    sb.vm("buffer_store_dwordx4 %s, v%d, s[%d:%d], s60 offen" % (vr(T + 64, 4), V + 16, SO, SO + 3), "st")


def g_waves(a):
    sb = Sb(a)
    V = 48
    a("L_G:")
    if OPT["probe"]:
        a("s_memrealtime s[96:97]")
    ln_block(a)
    a("""
    s_lshl_b32 s62, s%d, 13
    s_lshl_b32 s61, s%d, 11
    s_add_u32 s62, s62, s61
    v_lshlrev_b32 v8, 4, v1
    s_waitcnt lgkmcnt(0)
    """ % (S_LN, S_WV))
    descriptors(a)
    a("buffer_load_dwordx4 %s, v8, s[%d:%d], s62 offen" % (vr(V, 4), SX, SX + 3))
    a("buffer_load_dwordx4 %s, v8, s[%d:%d], s62 offen offset:1024" % (vr(V + 4, 4), SX, SX + 3))
    stamp_init(a)
    roles(a)
    g_addresses(a)
    make_tag(a)
    a("v_mov_b32 v%d, v8" % (V + 8))
    a("s_cmp_ge_u32 s%d, 28\ns_cbranch_scc1 L_sp_issue\ns_waitcnt vmcnt(0)\nL_ln_go:" % S_LOC)
    stamp(a)
    ln_part1(a, sb, V)
    a("""
    s_lshl_b32 s60, s%d, 13
    s_lshl_b32 s61, s%d, 11
    s_add_u32 s60, s60, s61
    s_add_u32 s61, s60, 0x%x
    s_cmp_ge_u32 s%d, 28
    """ % (S_LN, S_WV, WS_XNB, S_LOC))
    sb.drain("lgkm")
    stamp(a)
    if OPT["stamps"]:
        a("s_cmp_ge_u32 s%d, 28" % S_LOC)
    a("s_barrier\ns_cbranch_scc1 L_sp_job")
    stamp(a)
    ln_rd, ln_st = ln_part2(9, 8, FA7)
    g_main(a, sb, ln_rd, ln_st)
    a("L_g_tail:")
    stamp(a)
    g_tail(a, sb)
    if OPT["probe"]:
        a("""
        s_waitcnt vmcnt(0)
        s_memrealtime s[98:99]
        s_waitcnt lgkmcnt(0)
        s_sub_u32 s97, s98, s96
        s_mul_i32 s97, s97, %d
        s_add_u32 s97, s97, s98
        L_probe:
        s_memrealtime s[98:99]
        s_waitcnt lgkmcnt(0)
        s_sub_u32 s99, s98, s97
        s_cmp_lt_i32 s99, 0
        s_cbranch_scc1 L_probe
        """ % OPT["probe"])
    stamp_flush(a)
    a("s_endpgm")
    a("L_sp_issue:")
    spare_issue(a)
    a("s_waitcnt vmcnt(16)\ns_branch L_ln_go")
    a("L_sp_job:")
    spare_job(a, ln_rd, ln_st)
    a("s_branch L_g_tail")


DX, DW = 8, 16
PR, Z8, Z1, Z256, Z16, Z2, AR, CB, KT = 24, 30, 33, 36, 39, 42, 45, 47, 50
KAD, KRD = 20, 22
PKE, PKG, FE, FG, KD = 64, 96, 144, 176, 208


def h_offsets(a):
    a("""
    v_lshrrev_b32 v2, 3, v1
    v_and_b32 v3, 7, v1
    v_lshrrev_b32 v4, 4, v1
    v_xor_b32 v5, v3, v4
    v_lshlrev_b32 v5, 4, v5
    v_lshl_add_u32 v5, v2, 10, v5
    s_lshl_b32 s60, s%d, 18
    s_lshl_b32 s61, s%d, 16
    s_add_u32 s60, s60, s61
    v_add_u32 v5, s60, v5
    """ % (S_RB, S_WV))
    for i in range(8):
        a("v_add_u32 v%d, %d, v5" % (DX + i, i * 8192 - (i & 3) * 1024))
        if i & 1:
            a("v_xor_b32 v%d, 64, v%d" % (DX + i, DX + i))
    a("""
    s_lshr_b32 s60, s%d, 1
    s_lshl_b32 s60, s60, 2
    v_bfe_u32 v4, v1, 4, 1
    v_lshl_add_u32 v4, v4, 1, s60
    v_xor_b32 v4, v3, v4
    v_lshlrev_b32 v4, 4, v4
    v_mul_u32_u24 v5, 3584, v2
    v_add_u32 v5, v5, v4
    s_and_b32 s60, s%d, 1
    s_mul_i32 s60, s60, %d
    s_lshl_b32 s61, s%d, 7
    s_add_u32 s60, s60, s61
    v_add_u32 v5, s60, v5
    """ % (S_WV, S_WV, 32 * 3584, S_FU))
    for i in range(4):
        a("v_add_u32 v%d, %d, v5" % (DW + i, i * 8 * 3584 - i * 1024))
    a("""
    s_add_u32 s%d, s%d, s%d
    s_lshl_b32 s60, s%d, 13
    s_lshl_b32 s61, s%d, 12
    s_cmp_lt_u32 s%d, 28
    s_cselect_b32 s62, -1, 0
    s_cselect_b32 s63, 0, %d
    """ % (S_ORD, S_RB, S_FU, S_WV, S_WV, S_LOC, 102400))
    for sl in range(3):
        for j, (base, reg) in enumerate(((XS[sl], 60), (XS[sl] + 4096, 60), (WSL[sl], 61))):
            d = S_M0 + 3 * sl + j
            a("s_add_u32 s%d, s%d, %d\ns_and_b32 s%d, s%d, s62\ns_or_b32 s%d, s%d, s63" % (d, reg, base, d, d, d, d))


def dma(stage):
    r = Rec()
    sl = stage % 3
    with r.group():
        r("s_add_u32 s%d, s%d, %d\ns_and_b32 s%d, s%d, 3" % (S_KW, S_ORD, stage, S_KW, S_KW))
        if stage & 4:
            r("s_or_b32 s%d, s%d, 4" % (S_KW, S_KW))
        r("s_lshl_b32 s%d, s%d, 7\ns_mul_i32 s%d, s%d, %d" % (S_KX, S_KW, S_KW, S_KW, 64 * 3584))
    for j in range(3):
        for i in range(4):
            with r.group():
                if i == 0:
                    r("s_mov_b32 m0, s%d" % (S_M0 + 3 * sl + j))
                v, d, k = (DX + 4 * j + i, SX, S_KX) if j < 2 else (DW + i, SW, S_KW)
                r.vm("buffer_load_dwordx4 v%d, s[%d:%d], s%d offen offset:%d lds" % (v, d, d + 3, k, 1024 * i), ("S", stage))
    return r.items


def cmul4(r, jobs):
    for d, p, z in jobs:
        r("v_mul_f32 v%d, v%d, v%d\nv_mul_f32 v%d, v%d, v%d" % (d, p, z, d + 1, p, z + 1))
    for d, p, z in jobs:
        r("v_fmac_f32 v%d, v%d, v%d\nv_fmac_f32 v%d, v%d, v%d" % (d, p + 1, z + 2, d + 1, p + 1, z))


def neg(r, z):
    r("v_xor_b32 v%d, 0x80000000, v%d" % (z + 2, z + 1))


def kg_issue(a, sb):
    a("""
    s_lshl_b32 s%d, s%d, 5
    s_add_u32 s%d, s%d, s%d
    s_lshl_b32 s60, s%d, 9
    v_lshl_add_u32 v6, v0, 1, s60
    s_lshl_b32 s60, s%d, 2
    s_load_dword s%d, s[%d:%d], s60
    """ % (S_P, S_XCD, S_P, S_P, S_LOC, S_P, S_P, S_LDT, P_LDT, P_LDT + 1))
    for i, p in enumerate((P_ARE, P_AIM, P_BRE, P_BIM, P_CRE, P_CIM)):
        sb.vm("global_load_ushort v%d, v6, s[%d:%d]" % (PR + i, p, p + 1), "kp")


def kg_powers(r):
    T = KT
    r("""
    s_lshr_b32 s60, s%d, 1
    s_lshl_b32 s60, s60, 4
    s_lshr_b32 s60, s%d, s60
    s_lshl_b32 s60, s60, 16
    v_mov_b32 v%d, 0x%x
    v_mul_f32 v%d, s60, v%d
    v_exp_f32 v%d, v%d
    v_cvt_pk_bf16_f32 v%d, v%d, v%d
    v_and_b32 v%d, 0xffff0000, v%d
    """ % (S_WV, S_LDT, T, LOG2E, T, T, T, T, T, T, T, T, T))
    r.need("vm", "kp")
    for i in range(6):
        r("v_lshlrev_b32 v%d, 16, v%d" % (PR + i, PR + i))
    r("v_mul_f32 v%d, v%d, v%d\nv_mul_f32 v%d, v%d, v%d" % (AR, PR, T, AR + 1, PR + 1, T))
    r("v_mul_f32 v%d, v%d, v%d\nv_mul_f32 v%d, v%d, v%d" % (Z2, PR + 2, T, Z2 + 1, PR + 3, T))
    neg(r, Z2)
    cmul4(r, [(CB, PR + 4, Z2)])
    zs = ((Z8, 8), (Z1, 1), (Z256, 256))
    for k, (z, l) in enumerate(zs):
        r("v_mul_f32 v%d, 0x%x, v%d" % (T + 2 * k, f2u(l * math.log2(math.e)), AR))
        r("v_mul_f32 v%d, 0x%x, v%d" % (T + 2 * k + 1, f2u(l / (2 * math.pi)), AR + 1))
    for k, (z, l) in enumerate(zs):
        r("v_fract_f32 v%d, v%d\nv_exp_f32 v%d, v%d" % (T + 2 * k + 1, T + 2 * k + 1, T + 2 * k, T + 2 * k))
    for k, (z, l) in enumerate(zs):
        r("v_cos_f32 v%d, v%d\nv_sin_f32 v%d, v%d" % (z, T + 2 * k + 1, z + 1, T + 2 * k + 1))
    for k, (z, l) in enumerate(zs):
        r("v_mul_f32 v%d, v%d, v%d\nv_mul_f32 v%d, v%d, v%d" % (z, z, T + 2 * k, z + 1, z + 1, T + 2 * k))
    for z, l in zs:
        neg(r, z)
    cmul4(r, [(Z16, Z8, Z8), (Z2, Z1, Z1)])
    neg(r, Z16); neg(r, Z2)
    e0, e1, n0, n1 = T, T + 2, T + 4, T + 6
    r("v_cvt_pk_bf16_f32 v%d, 1.0, v%d\nv_cvt_pk_bf16_f32 v%d, 0, v%d" % (PKE, Z8, PKE + 16, Z8 + 1))
    cmul4(r, [(e1, Z8, Z16)])
    cur0, cur1 = Z16, e1
    for j in range(1, 16):
        if j < 15:
            cmul4(r, [(n0, cur0, Z16), (n1, cur1, Z16)])
        r("v_cvt_pk_bf16_f32 v%d, v%d, v%d" % (PKE + j, cur0, cur1))
        r("v_cvt_pk_bf16_f32 v%d, v%d, v%d" % (PKE + 16 + j, cur0 + 1, cur1 + 1))
        cur0, cur1 = n0, n1
        e0, e1, n0, n1 = n0, n1, e0, e1


def kg_rows(r):
    g = [CB] + [FE + 2 * i for i in range(20)]
    cmul4(r, [(g[1], g[0], Z1), (g[2], g[0], Z2), (g[8], g[0], Z256)])
    cmul4(r, [(g[3], g[1], Z2), (g[4], g[2], Z2), (g[12], g[8], Z256), (g[9], g[2], Z256)])
    cmul4(r, [(g[5], g[3], Z2), (g[6], g[4], Z2), (g[14], g[12], Z256), (g[10], g[4], Z256)])
    cmul4(r, [(g[7], g[5], Z2), (g[11], g[6], Z256), (g[16], g[14], Z256), (g[13], g[10], Z256)])
    cmul4(r, [(g[15], g[13], Z256), (g[17], g[16], Z256)])
    for k in (18, 19, 20):
        cmul4(r, [(g[k], g[k - 1], Z256)])
    for j in range(11):
        hi = g[2 * j + 1] if j < 10 else g[20]
        r("v_cvt_pk_bf16_f32 v%d, v%d, v%d" % (PKG + j, g[2 * j], hi))
        r("v_cvt_pk_bf16_f32 v%d, -v%d, -v%d" % (PKG + 12 + j, g[2 * j] + 1, hi + 1))
    r("v_mov_b32 v%d, 0\nv_mov_b32 v%d, 0" % (PKG + 11, PKG + 23))
    r("""
    s_lshl_b32 s60, s%d, 12
    s_add_u32 s60, s60, %d
    v_bfe_u32 v2, v1, 2, 2
    v_lshlrev_b32 v3, 4, v2
    v_lshl_add_u32 v3, v1, 6, v3
    v_add_u32 v%d, s60, v3
    v_lshrrev_b32 v3, 5, v1
    v_lshl_add_u32 v2, v3, 3, v2
    v_lshlrev_b32 v2, 6, v2
    v_bfe_u32 v4, v1, 4, 1
    v_xor_b32 v3, v3, v4
    v_bfe_u32 v4, v1, 1, 1
    v_lshl_add_u32 v3, v3, 1, v4
    v_lshl_add_u32 v2, v3, 4, v2
    v_and_b32 v3, 1, v1
    v_lshl_add_u32 v2, v3, 3, v2
    v_add_u32 v%d, s60, v2
    v_xor_b32 v%d, 16, v%d
    """ % (S_WV, EXT, KAD, KRD, KRD + 1, KRD))


def kg_transpose(r):
    for src, n, dst, tag in ((PKE, 4, FE, "fe"), (PKE + 16, 4, FE + 16, "fe"), (PKG, 3, FG, "fg"), (PKG + 12, 3, FG + 16, "fg")):
        for p in range(n):
            if p:
                r("v_xor_b32 v2, %d, v%d" % (16 * p, KAD))
            r.ds("ds_write_b128 v%d, %s" % (2 if p else KAD, vr(src + 4 * p, 4)), "kw")
        for k in range(4):
            for e in range(2):
                r.ds("ds_read_b64_tr_b16 %s, v%d offset:%d" % (vr(dst + 4 * k + 2 * e, 2), KRD + e, k * 1024 + e * 256), tag)


def kg_product(r):
    for k in range(8):
        r("v_mfma_f32_32x32x16_bf16 %s, %s, %s, %s" % (vr(KD, 16), vr(FG + 4 * k, 4), vr(FE + 4 * k, 4), vr(KD, 16) if k else "0"))
    r("""
    s_lshr_b32 s60, s%d, 1
    s_lshl_b32 s60, s60, 13
    s_add_u32 s60, s60, %d
    s_and_b32 s61, s%d, 1
    s_mul_i32 s61, s61, 5120
    s_add_u32 s62, s60, s61
    v_lshl_add_u32 v%d, v1, 4, s62
    s_sub_u32 s62, s60, s61
    s_add_u32 s62, s62, 5120
    v_lshl_add_u32 v%d, v1, 4, s62
    s_add_u32 s77, s60, 3072
    """ % (S_WV, EXT, S_WV, KAD, KAD + 1))
    for i in range(3):
        r.ds("ds_write_b128 v%d, %s offset:%d" % (KAD, vr(KD + 4 * i, 4), 1024 * i), "kw")


def kg_table(r):
    T = KT
    for i in range(3):
        r.ds("ds_read_b128 %s, v%d offset:%d" % (vr(FE + 4 * i, 4), KAD + 1, 1024 * i), "kx")
    r("""
    v_and_b32 v%d, 31, v1
    v_lshrrev_b32 v%d, 5, v1
    v_lshlrev_b32 v%d, 3, v%d
    v_lshl_add_u32 v%d, v%d, 4, v%d
    v_add_u32 v%d, s77, v%d
    v_cmp_gt_u32 vcc, 32, v1
    v_lshlrev_b32 v%d, 3, v%d
    v_add_u32 v%d, 512, v%d
    v_lshlrev_b32 v%d, 2, v%d
    v_add_u32 v%d, 768, v%d
    v_cndmask_b32 v%d, v%d, v%d, vcc
    v_add_u32 v%d, s77, v%d
    v_mov_b32 v%d, 128
    v_cndmask_b32 v%d, v%d, 4, vcc
    v_add_u32 v%d, v%d, v%d
    v_lshlrev_b32 v%d, 8, v%d
    v_lshl_add_u32 v%d, v%d, 1, v%d
    v_add_u32 v%d, s77, v%d
    """ % (T, T + 1, T + 2, T + 1, T + 2, T, T + 2, T + 2, T + 2,
           T + 3, T, T + 3, T + 3, T + 4, T, T + 4, T + 4, T + 3, T + 4, T + 3, T + 3, T + 3,
           T + 4, T + 4, T + 4, T + 4, T + 4, T + 3,
           T + 5, T + 1, T + 5, T, T + 5, T + 5, T + 5))
    r.need("lgkm", "kx")
    for i in range(12):
        r("v_add_f32 v%d, v%d, v%d" % (KD + i, KD + i, FE + i))
    for i in range(4):
        r("v_cvt_pk_bf16_f32 v%d, v%d, v%d" % (FE + i, KD + 2 * i, KD + 2 * i + 1))
    for i in range(4):
        r("v_cvt_pk_bf16_f32 v%d, v%d, v%d" % (FE + 4 + i, KD + 8 + i, KD + 8 + i))
    r.ds("ds_write_b64 v%d, %s" % (T + 2, vr(FE, 2)), "kw")
    r.ds("ds_write_b32 v%d, v%d" % (T + 3, FE + 2), "kw")
    r.ds("ds_write_b32 v%d, v%d" % (T + 4, FE + 3), "kw")
    for i in range(4):
        r.ds("ds_write_b16 v%d, v%d offset:%d" % (T + 5, FE + 4 + i, 1024 + 64 * i), "kw")


XAD, XG, XO, XN, XF, XFA, XNA = 24, (36, 112), (64, 84), 104, 124, 123, 47
TAB = EXT + 3072


def ex_addresses(r):
    T, U = 144, 156
    r("""
    v_lshlrev_b32 v%d, 3, v0
    v_cvt_f32_u32 v%d, v%d
    v_lshlrev_b32 v%d, 4, v0
    """ % (T, T, T, U))
    for i in range(1, 12):
        r("v_add_f32 v%d, 0x%x, v%d" % (T + i, f2u(float(i)), T))
    for i in range(6):
        r("v_cvt_pk_bf16_f32 v%d, v%d, v%d" % (T + 2 * i, T + 2 * i, T + 2 * i + 1))
    r("v_cmp_gt_u32 s[78:79], 16, v0")
    for i in range(11):
        r("v_lshlrev_b32_sdwa v%d, 1, v%d dst_sel:DWORD dst_unused:UNUSED_PAD src0_sel:DWORD src1_sel:WORD_%d" % (XAD + i, T + 2 * (i >> 1), i & 1))
        r("v_add_u32 v%d, %d, v%d" % (T + 1, IDXC + 2 * i, U))
        r("v_cndmask_b32 v%d, v%d, v%d, s[78:79]" % (XAD + i, XAD + i, T + 1))
    r("v_add_u32 v%d, %d, v%d" % (XAD + 11, L_TC + 32, U))


def ex_gather(r):
    for ch in range(2):
        for i in range(11):
            r.ds("ds_read_u16 v%d, v%d offset:%d" % (XG[ch] + i, XAD + i, TAB - IDXC + 8192 * ch), "g%d" % ch)
    r("""
    v_bfe_u32 v2, v1, 3, 1
    v_lshlrev_b32 v3, 13, v2
    v_add_u32 v3, %d, v3
    """ % TAB)
    r.ds("ds_read_b64 %s, v3" % vr(XF + 2, 2), "gf")
    r("""
    v_mul_u32_u24 v2, %d, v2
    v_and_b32 v3, 3, v1
    v_mul_u32_u24 v4, %d, v3
    v_add_u32 v2, v2, v4
    v_bfe_u32 v4, v1, 2, 1
    v_lshl_add_u32 v2, v4, 4, v2
    v_add_u32 v%d, %d, v2
    v_mul_u32_u24 v4, v4, v3
    v_cmp_ne_u32 s[78:79], 0, v4
    v_lshlrev_b32 v3, 4, v3
    v_sub_u32 v5, 64, v3
    v_mov_b32 v%d, 0
    v_mov_b32 v%d, 0
    """ % (TCH, TCOPY, XFA, L_TC, XF, XF + 1))
    for ch in range(2):
        S, D = XG[ch], XO[ch]
        O, D2, O2 = D + 6, D + 9, D + 13
        r.need("lgkm", "g%d" % ch)
        for k in range(4):
            r("v_lshl_or_b32 v%d, v%d, 16, v%d" % (D + k, S + 2 * k + 1, S + 2 * k))
            r("v_lshl_or_b32 v%d, v%d, 16, v%d" % (O + k, S + 2 * k + 2, S + 2 * k + 1))
        for k in range(1, 5):
            r("v_lshl_or_b32 v%d, v%d, 16, v%d" % (D2 + k, S + 2 * k + 1, S + 2 * k))
            r("v_lshl_or_b32 v%d, v%d, 16, v%d" % (O2 + k, S + 2 * k + 2, S + 2 * k + 1))
    r.need("lgkm", "gf")
    r("""
    v_lshlrev_b64 %s, v5, %s
    v_cndmask_b32 v%d, 0, v%d, s[78:79]
    v_cndmask_b32 v%d, 0, v%d, s[78:79]
    """ % (vr(XF + 2, 2), vr(XF + 2, 2), XF + 2, XF + 2, XF + 3, XF + 3))


def ex_write(r):
    for ch in range(2):
        D = XO[ch]
        for phi, src in enumerate((D, D + 6, D + 10, D + 14)):
            r.ds("ds_write_b128 v%d, %s offset:%d" % (XAD + 11, vr(src, 4), ch * TCH + phi * TCOPY), "xw")
    r.ds("ds_write_b128 v%d, %s" % (XFA, vr(XF, 4)), "xw")


def xn_issue(r):
    r("""
    v_lshrrev_b32 v2, 1, v1
    v_and_b32 v3, 1, v1
    v_lshlrev_b32 v4, 13, v2
    v_lshl_add_u32 v4, v3, 4, v4
    s_lshl_b32 s60, s%d, 5
    s_lshl_b32 s61, s%d, 19
    s_add_u32 s60, s60, s61
    s_add_u32 s60, s60, 0x%x
    s_add_u32 s61, s60, 0x40000
    """ % (S_P, S_WV, WS_XNB))
    r.vm("buffer_load_dwordx4 %s, v4, s[%d:%d], s60 offen sc1" % (vr(XN, 4), SWS, SWS + 3), "xn")
    r.vm("buffer_load_dwordx4 %s, v4, s[%d:%d], s61 offen sc1" % (vr(XN + 4, 4), SWS, SWS + 3), "xn")
    r("""
    v_mul_u32_u24 v3, %d, v3
    v_lshl_add_u32 v3, v2, 4, v3
    s_lshl_b32 s60, s%d, 10
    s_add_u32 s60, s60, %d
    v_add_u32 v%d, s60, v3
    v_lshrrev_b32 v2, 7, v0
    v_mul_u32_u24 v2, %d, v2
    v_and_b32 v3, 127, v0
    v_lshl_add_u32 v2, v3, 2, v2
    v_add_u32 v2, %d, v2
    v_mov_b32 v3, 0
    v_lshlrev_b32 v4, 2, v1
    v_min_u32 v4, 60, v4
    v_add_u32 v4, %d, v4
    """ % (UCH, S_WV, L_UI + 512, XNA, UCH, L_UI, L_FLG))
    r.ds("ds_write_b32 v2, v3", "xw")
    r.ds("ds_write_b32 v4, v3", "xw")


def xn_write(r):
    r.need("vm", "xn")
    r.ds("ds_write_b128 v%d, %s" % (XNA, vr(XN, 4)), "xw")
    r.ds("ds_write_b128 v%d, %s offset:512" % (XNA, vr(XN + 4, 4)), "xw")


CV = 32
CRA, CRB = 128, 129


def conv_addresses(r):
    r("""
    v_and_b32 v2, 15, v1
    v_lshrrev_b32 v3, 4, v1
    v_add_u32 v4, 1, v2
    v_and_b32 v5, 3, v4
    v_mul_u32_u24 v5, %d, v5
    v_lshrrev_b32 v4, 2, v4
    v_lshl_add_u32 v5, v4, 3, v5
    v_lshl_add_u32 v5, v3, 4, v5
    s_lshr_b32 s60, s%d, 1
    s_and_b32 s61, s%d, 1
    s_lshl_b32 s61, s61, 8
    s_mul_i32 s62, s60, %d
    s_add_u32 s62, s62, s61
    s_add_u32 s62, s62, %d
    v_add_u32 v%d, s62, v5
    v_lshlrev_b32 v4, 5, v2
    v_lshlrev_b32 v5, 4, v3
    v_sub_u32 v4, v4, v5
    s_mul_i32 s62, s60, %d
    s_sub_u32 s62, s62, s61
    s_add_u32 s62, s62, %d
    v_add_u32 v%d, s62, v4
    v_lshl_add_u32 v%d, v2, 6, v5
    """ % (TCOPY, S_WV, S_WV, TCH, L_TC, CRA, UCH, L_UI + 16 * 33 - 192, CRB, CRB + 1))


def conv_main(a, sb, fill):
    A, FA, FB = CV, CV + 32, CV + 64

    def ra(mu, nu):
        for e in range(2):
            sb.ds("ds_read_b64 %s, v%d offset:%d" % (vr(FA + 4 * nu + 2 * e, 2), CRA, 64 * mu + 512 * nu + 8 * e), ("a", mu, nu))

    def rb(mu, de):
        sb.ds("ds_read_b128 %s, v%d offset:%d" % (vr(FB + 4 * de, 4), CRB, 512 * de + 64 * (3 - mu)), ("b", mu, de))
    ra(0, 0)
    for de in range(7, -1, -1):
        rb(0, de)
    for nu in range(1, 8):
        ra(0, nu)
    n = 0
    for mu in range(4):
        for nu in range(8):
            for j in range(7, nu - 1, -1):
                sb.need("lgkm", [("a", mu, nu), ("b", mu, j - nu)])
                c = A + 4 * j
                a("v_mfma_f32_16x16x32_bf16 %s, %s, %s, %s" % (vr(c, 4), vr(FA + 4 * nu, 4), vr(FB + 4 * (j - nu), 4),
                                                              "0" if mu == 0 and nu == 0 else vr(c, 4)))
                if mu < 3 and j == 7 and nu > 0:
                    ra(mu + 1, nu - 1)
                if mu < 3 and j == 7:
                    rb(mu + 1, 7 - nu)
                n += 1
                if fill and n % 6 == 3:
                    sb.vm(fill.pop(0), "wd")
            if mu < 3 and nu == 7:
                ra(mu + 1, 7)
    assert not fill


def conv_out(a, sb):
    A, T = CV, CV + 32
    a("s_lshl_b32 s60, s%d, 13\ns_add_u32 m0, s60, %d" % (S_WV, L_CRED))
    for r in range(32):
        sb.ds("ds_write_addtid_b32 v%d offset:%d" % (A + r, 256 * r), "w")
    a("""
    s_lshl_b32 s60, s%d, 2
    s_add_u32 s60, s60, %d
    v_mov_b32 v20, s60
    v_mov_b32 v21, %d
    v_mov_b32 v22, -1
    v_mov_b32 v23, s%d
    s_lshl_b32 s60, s%d, 13
    s_lshl_b32 s61, s%d, 11
    s_add_u32 s60, s60, s61
    s_add_u32 s63, s60, 0x%x
    s_lshl_b32 s60, s%d, 8
    s_add_u32 s60, s60, s%d
    s_lshl_b32 s60, s60, 5
    s_add_u32 s77, s60, 0x%x
    """ % (S_WV, L_FLG, L_FLG, S_TAG, S_P, S_WV, WS_Y, S_WV, S_P, WS_YF))
    sb.drain("lgkm")
    a("ds_write_b32 v20, v22")
    a("s_add_u32 m0, s61, %d" % L_CRED)
    lds_wait(a, "L_cw", 21, T, (0,))
    for t in range(2):
        for w in range(4):
            for r in range(4):
                sb.ds("ds_read_addtid_b32 v%d offset:%d" % (T + 16 * t + 4 * w + r, 8192 * w + 1024 * t + 256 * r), "r%d" % t)
    for t in range(2):
        sb.need("lgkm", "r%d" % t)
        b = T + 16 * t
        for c in range(2):
            for r in range(4):
                a("v_add_f32 v%d, v%d, v%d" % (b + 8 * c + r, b + 8 * c + r, b + 8 * c + 4 + r))
        for r in range(4):
            a("v_cvt_pk_bf16_f32 v%d, v%d, v%d" % (A + 4 * t + r, b + r, b + 8 + r))
        sb.vm("buffer_store_dwordx4 %s, v%d, s[%d:%d], s63 offen offset:%d sc1" % (vr(A + 4 * t, 4), CRB + 1, SWS, SWS + 3, 1024 * t), "st")


def h_waves(a):
    sb = Sb(a)
    roles(a)
    h_offsets(a)
    a("s_waitcnt lgkmcnt(0)")
    descriptors(a)
    a("""
    s_cmp_lt_u32 s%d, 2
    s_cselect_b32 s%d, s%d, s%d
    s_cselect_b32 s%d, s%d, s%d
    s_and_b32 s%d, s62, 0x%x
    s_mov_b32 s%d, 0x20000
    s_and_b32 s%d, s62, s%d
    """ % (S_WV, SW, P_WG, P_WU, SW + 1, P_WG + 1, P_WU + 1, SW + 2, 512 * 1792 * 2, SW + 3, SX + 2, SX + 2))
    stamp_init(a)
    kg_issue(a, sb)
    play(a, sb, dma(0) + dma(1) + dma(2))
    stamp(a)
    make_tag(a)

    def barrier(*need):
        sb.need("vm", list(need))
        sb.drain("lgkm")
        stamp(a)
        a("s_barrier")
        stamp(a)

    def piece(*fns):
        r = Rec()
        for f in fns:
            f(r)
        return r.items
    play(a, sb, piece(kg_powers))
    barrier(("S", 0))
    play(a, sb, piece(kg_rows))
    barrier(("S", 1))
    play(a, sb, weave(piece(kg_transpose), dma(3)))
    barrier(("S", 2))

    def ln_flag(r):
        ln_block(r)
        r("s_lshl_b32 s60, s%d, 4\ns_add_u32 s63, s60, 0x%x\nv_mov_b32 v2, s%d\ns_cmp_eq_u32 s%d, 0" % (S_LN, WS_LNF, S_TAG, S_WV))
        with r.group():
            r("s_cselect_b64 exec, 1, 0")
            r.vm("buffer_store_dword v2, off, s[%d:%d], s63 sc1" % (SWS, SWS + 3), "flag")
            r("s_mov_b64 exec, -1")
    play(a, sb, piece(ln_flag) + weave(piece(kg_product, ex_addresses), dma(4)))
    barrier(("S", 3))
    play(a, sb, weave(piece(kg_table), dma(5)))
    barrier(("S", 4))
    play(a, sb, weave(piece(ex_gather), dma(6)))
    barrier(("S", 5))
    a("""
    v_lshlrev_b32 v20, 4, v0
    v_add_u32 v20, 0x%x, v20
    v_min_u32 v21, 27, v1
    s_mul_i32 s60, s%d, 28
    v_add_u32 v21, s60, v21
    v_lshlrev_b32 v21, 6, v21
    v_add_u32 v21, 0x%x, v21
    """ % (WS_LNF, S_WV, WS_WF))
    polls = ["buffer_load_dword v%d, v%d, s[%d:%d], 0 offen sc1" % (22 + i, 20 + i, SWS, SWS + 3) for i in range(2)]
    for x in polls:
        sb.vm(x, "poll")
    play(a, sb, weave(piece(g2_setup, conv_addresses), dma(7)))
    sb.need("vm", ["poll", ("S", 6)])
    spin(a, "L_hp", polls, [22, 23])
    barrier()
    wl = wd_loads()

    def epoch(r):
        r("s_or_b32 s60, s2, s%d\nv_mov_b32 v2, s%d\ns_cmp_eq_u32 s60, 0" % (S_WV, S_TAG))
        with r.group():
            r("s_cselect_b64 exec, 1, 0")
            r.vm("buffer_store_dword v2, off, s[%d:%d], 0 sc1" % (SWS, SWS + 3), "flag")
            r("s_mov_b64 exec, -1")
    play(a, sb, piece(xn_issue, epoch) + weave(piece(ex_write), [[("vm", x, "wd")] for x in wl[:6]]))
    barrier(("S", 7))
    play(a, sb, piece(xn_write))
    for x in wl[6:10]:
        sb.vm(x, "wd")
    barrier()
    h_flag_addr(a, 27)
    for x in wl[10:14]:
        sb.vm(x, "wd")
    barrier()
    conv_main(a, sb, wl[14:])
    stamp(a)
    conv_out(a, sb)
    stamp(a)
    poll = "buffer_load_dword v2, v27, s[%d:%d], 0 offen sc1" % (SWS, SWS + 3)
    sb.vm(poll, "poll")
    sb.drain("vm")
    r = Rec(); post(r, 23, 77); play(a, sb, r.items)
    spin(a, "L_hh", [poll], [2])
    stamp(a)
    r = Rec()
    r("s_mul_i32 s60, s%d, %d\ns_add_u32 s60, s60, %d\nv_lshl_add_u32 v3, v1, 2, s60" % (S_WV, RWAVE, L_H0))
    for i in range(32):
        r.ds("ds_write_b32 v3, v%d offset:%d" % (ACC2 + i, RPITCH * i), "put")
    hooks = spread(a, sb, r.items, 15, 20)

    def h0_done():
        sb.drain("lgkm")
        a("ds_write_b32 v20, v22 offset:16")
    hooks[22] = h0_done
    hooks[25] = lambda: lds_wait(a, "L_hw", 21, 64, (1,))
    g2_stream(a, sb, lambda i: 8, 8, hooks)
    stamp(a)
    r = Rec(); put_tid(r, 1, L_H1); play(a, sb, r.items)
    sb.drain("lgkm")
    stamp(a)
    a("s_barrier")
    stamp_flush(a)


DESC = """.amdhsa_kernel %s
  .amdhsa_next_free_vgpr 256
  .amdhsa_next_free_sgpr 102
  .amdhsa_accum_offset 256
  .amdhsa_group_segment_fixed_size 0
  .amdhsa_kernarg_size 128
  .amdhsa_user_sgpr_count 2
  .amdhsa_user_sgpr_kernarg_segment_ptr 1
  .amdhsa_system_sgpr_workgroup_id_x 1
.end_amdhsa_kernel
"""


def kernel():
    a = Asm()
    a("""
    s_cmp_ge_u32 s2, 256
    s_cbranch_scc1 L_end
    s_load_dwordx16 s[8:23], s[0:1], 0
    s_load_dwordx16 s[24:39], s[0:1], 64
    v_lshrrev_b32 v2, 6, v0
    v_and_b32 v1, 63, v0
    v_readfirstlane_b32 s%d, v2
    v_and_b32 v0, 255, v0
    s_and_b32 s%d, s2, 7
    s_lshr_b32 s%d, s2, 3
    s_and_b32 s%d, s%d, 3
    s_cmp_lt_u32 s%d, 4
    s_cbranch_scc1 L_G
    """ % (S_W8, S_XCD, S_LOC, S_WV, S_W8, S_W8))
    h_waves(a)
    a("L_end:\ns_endpgm")
    g_waves(a)
    return a


def build():
    ref = open("cdna_kernels/%s.s.ref" % NAME).read().split("\n")
    head = [l for l in ref if l.startswith(";") and "@launch" not in l and "Override" not in l and "grid=ceil" not in l][:17]
    n = NAME + "_kernel"
    out = head + ["; @launch grid=(256,1,1) block=(512,1,1) lds=163840"]
    out += ['.amdgcn_target "amdgcn-amd-amdhsa--gfx950"', ".text", ".globl %s" % n, ".p2align 8", ".type %s,@function" % n, "%s:" % n]
    out += [kernel().finish(True), '.section .rodata,"a"', ".p2align 6", DESC % n]
    return "\n".join(out)


if __name__ == "__main__":
    for x in sys.argv[2:]:
        k, _, v = x.partition("=")
        OPT[k] = int(v) if v else True
    open(sys.argv[1], "w").write(build())
```

```python
import math
import sys
from contextlib import contextmanager
from asmlib import *
import parts as P
from parts import (cmul, cmul_n, NAME, P_U, P_ARE, P_AIM, P_BRE, P_BIM, P_CRE, P_CIM, P_LDT, P_DSK, P_WG, P_WU, P_WD, P_OUT, P_WS,
                   SX, SW, SWS, SO, S_WV, S_XCD, S_LOC, LOG2E, f2u, srd, unpack, wave_allsum, TCOPY, TCH, UCH, IDXC)

OPT = dict(stamps=False, probe=0, rot=1, pf=0, s1pre=9, w5=6, w6=18, w7=22, touch=1, sppf=1, xnt="", wnt="")

WS_LNF, WS_WF, WS_HF, WS_YF = 0x1000, 0x2000, 0x8000, 0x28000
WS_STATS, WS_XNB, WS_Y, WS_WDF, WS_H = 0x80000, 0x100000, 0x300000, 0x500000, 0x700000
WS_STAMP = 0xE00000
XS, WSL, EXT = (0, 32768, 131072), (81920, 98304, 114688), 65536
L_TC = 114688
L_UI = L_TC + 2 * TCH
L_FLG = L_UI + 2 * UCH
L_CS = (L_FLG + 64 + 1023) & ~1023
RPITCH = 272
RWAVE = 32 * RPITCH
L_CRED, L_H1, L_G0, L_G1, L_YI, L_H0 = 0, 0, 4 * RWAVE, 8 * RWAVE, 12 * RWAVE, 114688
assert L_CS + 1024 <= 163840 and L_YI + 8192 <= L_TC and L_H0 + 4 * RWAVE <= L_FLG
S_W8, S_RB, S_FU, S_KX, S_KW, S_ORD, S_TAG, S_LN, S_P, S_LDT = 59, 64, 65, 66, 67, 68, 69, 70, 71, 72
S_R, S_CB, S_HO, S_CNT = 73, 74, 75, 76
S_M0 = 80
S_GRP = 89
V_STAMP = 7
SPIN = 1 << 18


class Rec:
    def __init__(self):
        self.items, self.cur = [], None

    def _add(self, op):
        (self.cur if self.cur is not None else self.items).append(op if self.cur is not None else [op])

    def __call__(self, text):
        for ln in text.split("\n"):
            ln = ln.strip()
            if ln and not ln.startswith(";"):
                self._add(("a", ln))

    def vm(self, text, tag=None): self._add(("vm", text, tag))
    def ds(self, text, tag=None): self._add(("ds", text, tag))
    def need(self, kind, tags): self._add(("need", kind, tags))
    def drain(self, *kinds): self._add(("drain", kinds))

    @contextmanager
    def group(self):
        self.cur = []
        yield
        self.items.append(self.cur)
        self.cur = None


def play(a, sb, items):
    for g in items:
        for op in g:
            if op[0] == "a": a(op[1])
            elif op[0] == "vm": sb.vm(op[1], op[2])
            elif op[0] == "ds": sb.ds(op[1], op[2])
            elif op[0] == "need": sb.need(op[1], op[2])
            else: sb.drain(*op[1])


def weave(main, side, lead=0, span=1.0):
    out, n, k = list(main[:lead]), len(main) - lead, 0
    for i, g in enumerate(main[lead:]):
        while k < len(side) and k * n * span <= i * len(side):
            out.append(side[k]); k += 1
        out.append(g)
    return out + list(side[k:])


def stamp(a):
    if OPT["stamps"]:
        a("s_memtime s[98:99]\ns_waitcnt lgkmcnt(0)\ns_lshl_b64 exec, 1, s100\nv_mov_b32 v%d, s98\ns_mov_b64 exec, -1\ns_add_u32 s100, s100, 1" % V_STAMP)


def stamp_init(a):
    if OPT["stamps"]:
        a("s_mov_b32 s100, 1\ns_memrealtime s[98:99]\ns_waitcnt lgkmcnt(0)\nv_mov_b32 v%d, 0\nv_writelane_b32 v%d, s98, 0" % (V_STAMP, V_STAMP))
        stamp(a)


def stamp_flush(a):
    if OPT["stamps"]:
        a("s_waitcnt vmcnt(0)")
        stamp(a)
        a("s_memrealtime s[98:99]\ns_waitcnt lgkmcnt(0)\nv_writelane_b32 v%d, s98, 63" % V_STAMP)
        a("""
        s_lshl_b32 s60, s2, 11
        s_lshl_b32 s61, s%d, 8
        s_add_u32 s60, s60, s61
        s_add_u32 s60, s60, 0x%x
        v_lshlrev_b32 v2, 2, v1
        buffer_store_dword v%d, v2, s[%d:%d], s60 offen
        """ % (S_W8, WS_STAMP, V_STAMP, SWS, SWS + 3))


def descriptors(a):
    a("s_load_dword s%d, s[%d:%d], 0" % (S_TAG, P_WS, P_WS + 1))
    srd(a, SX, P_U, 2048 * 512 * 2)
    srd(a, SWS, P_WS, 0x1000000)


def make_tag(a):
    a("s_waitcnt lgkmcnt(0)\ns_mul_i32 s%d, s%d, 0x9e3779b1\ns_add_u32 s%d, s%d, 0x7f4a7c15" % (S_TAG, S_TAG, S_TAG, S_TAG))


def post(r, vtag, soff):
    with r.group():
        r("s_mov_b64 exec, 1")
        r.vm("buffer_store_dword v%d, off, s[%d:%d], s%d sc1" % (vtag, SWS, SWS + 3, soff), "flag")
        r("s_mov_b64 exec, -1")


def spin(a, label, loads, regs):
    a("s_mov_b32 s%d, %d" % (S_CNT, SPIN))
    a("%s:" % label)
    a("v_cmp_ne_u32 vcc, s%d, v%d" % (S_TAG, regs[0]))
    for r in regs[1:]:
        a("v_cmp_ne_u32 s[62:63], s%d, v%d\ns_or_b64 vcc, vcc, s[62:63]" % (S_TAG, r))
    a("s_cbranch_vccz %s_ok" % label)
    for x in loads:
        a(x)
    a("s_sub_u32 s%d, s%d, 1\ns_waitcnt vmcnt(0)\ns_cbranch_scc0 %s\n%s_ok:" % (S_CNT, S_CNT, label, label))


def lds_wait(a, label, vaddr, T, groups):
    a("%s:" % label)
    for i, g in enumerate(groups):
        a("ds_read_b128 %s, v%d offset:%d" % (vr(T + 4 * i, 4), vaddr, 16 * g))
    a("s_waitcnt lgkmcnt(0)")
    for i in range(1, 4 * len(groups)):
        a("v_and_b32 v%d, v%d, v%d" % (T, T, T + i))
    a("v_cmp_eq_u32 vcc, 0, v%d\ns_cbranch_vccnz %s" % (T, label))


def roles(a):
    a("""
    s_and_b32 s60, s%d, 1
    s_lshl_b32 s60, s60, 2
    s_and_b32 s61, s%d, 3
    s_add_u32 s%d, s60, s61
    s_lshr_b32 s60, s%d, 1
    s_mul_i32 s60, s60, 7
    s_lshr_b32 s61, s%d, 2
    s_add_u32 s%d, s60, s61
    """ % (S_XCD, S_LOC, S_RB, S_XCD, S_LOC, S_FU))


def ln_block(a):
    a("""
    s_and_b32 s60, s%d, 1
    s_lshl_b32 s60, s60, 7
    s_lshr_b32 s61, s%d, 1
    s_lshl_b32 s61, s61, 5
    s_add_u32 s60, s60, s61
    s_add_u32 s%d, s60, s%d
    """ % (S_XCD, S_XCD, S_LN, S_LOC))


S_PX, S_PW, S_JUNK = 4, 36, 101


def pf_bases(a):
    a("""
    s_and_b32 s60, s%d, 1
    s_lshl_b32 s60, s60, 5
    s_add_u32 s60, s60, s%d
    s_lshl_b32 s60, s60, 2
    s_add_u32 s60, s60, s%d
    s_lshl_b32 s60, s60, 13
    s_add_u32 s%d, s%d, s60
    s_addc_u32 s%d, s%d, 0
    s_lshl_b32 s60, s%d, 1
    s_and_b32 s61, s%d, 1
    s_add_u32 s60, s60, s61
    s_mul_i32 s60, s60, 3584
    s_lshr_b32 s61, s%d, 1
    s_mul_i32 s61, s61, 896
    s_add_u32 s60, s60, s61
    s_add_u32 s60, s60, %d
    s_cmp_lt_u32 s%d, 2
    s_cselect_b32 s%d, s%d, s%d
    s_cselect_b32 s%d, s%d, s%d
    s_add_u32 s%d, s%d, s60
    s_addc_u32 s%d, s%d, 0
    """ % (S_XCD, S_LOC, S_WV, S_PX, P_U, S_PX + 1, P_U + 1, S_LOC, S_WV, S_XCD, 4 * 64 * 3584, S_WV,
           S_PW, P_WG, P_WU, S_PW + 1, P_WG + 1, P_WU + 1, S_PW, S_PW, S_PW + 1, S_PW + 1))


def pf_chunk(a, c):
    if not OPT["pf"]:
        return
    for i in range(8):
        a("s_load_dword s%d, s[%d:%d], %d" % (S_JUNK, S_PX, S_PX + 1, 1024 * i + 128 * c))
        if i < 7:
            a("s_load_dword s%d, s[%d:%d], %d" % (S_JUNK, S_PW, S_PW + 1, (c - 4) * 64 * 3584 + 128 * i))


RA, RB, RB2, SEL, CS = 10, 12, 16, 20, 24
MB, MA = 28, 40
SETS, FA7 = (48, 72), 96
ACC = 128
VHS = 38


def ln_part1(a, sb, V):
    F, T, S, D = (V + 10, V + 18), V + 26, (V + 34, V + 36), V + 38
    for i in range(2):
        unpack(a, F[i], V + 4 * i, 4)
    for i in range(2):
        f, t = F[i], T + 4 * i
        a("v_pk_add_f32 %s, %s, %s" % (vr(t, 2), vr(f, 2), vr(f + 2, 2)))
        a("v_pk_add_f32 %s, %s, %s" % (vr(t + 2, 2), vr(f + 4, 2), vr(f + 6, 2)))
    for i in range(2):
        t = T + 4 * i
        a("v_pk_add_f32 %s, %s, %s" % (vr(t, 2), vr(t, 2), vr(t + 2, 2)))
    for i in range(2):
        a("v_add_f32 v%d, v%d, v%d" % (S[i], T + 4 * i, T + 4 * i + 1))
    wave_allsum(a, [S[0], S[1]], [T, T + 1])
    for i in range(2):
        a("v_mul_f32 v%d, 0x%x, v%d" % (S[i], f2u(1.0 / 512), S[i]))
    for i in range(2):
        for j in range(4):
            a("v_pk_add_f32 %s, %s, %s op_sel_hi:[1,0] neg_lo:[0,1] neg_hi:[0,1]" % (vr(D + 2 * j, 2), vr(F[i] + 2 * j, 2), vr(S[i], 2)))
        t = T + 4 * i
        a("v_pk_mul_f32 %s, %s, %s" % (vr(t, 2), vr(D, 2), vr(D, 2)))
        a("v_pk_mul_f32 %s, %s, %s" % (vr(t + 2, 2), vr(D + 2, 2), vr(D + 2, 2)))
        a("v_pk_fma_f32 %s, %s, %s, %s" % (vr(t, 2), vr(D + 4, 2), vr(D + 4, 2), vr(t, 2)))
        a("v_pk_fma_f32 %s, %s, %s, %s" % (vr(t + 2, 2), vr(D + 6, 2), vr(D + 6, 2), vr(t + 2, 2)))
        a("v_pk_add_f32 %s, %s, %s" % (vr(t, 2), vr(t, 2), vr(t + 2, 2)))
        a("v_add_f32 v%d, v%d, v%d" % (S[i] + 1, t, t + 1))
    wave_allsum(a, [S[0] + 1, S[1] + 1], [T, T + 1])
    for i in range(2):
        a("v_mul_f32 v%d, 0x%x, v%d" % (S[i] + 1, f2u(1.0 / 512), S[i] + 1))
    for i in range(2):
        a("v_cvt_pk_bf16_f32 v%d, v%d, v%d" % (T + i, S[i], S[i] + 1))
    for i in range(2):
        a("v_lshlrev_b32 v%d, 16, v%d" % (S[i], T + i))
        a("v_and_b32 v%d, 0xffff0000, v%d" % (S[i] + 1, T + i))
    for i in range(2):
        a("v_add_f32 v%d, 0x%x, v%d" % (S[i] + 1, f2u(1e-5), S[i] + 1))
    a("v_cvt_pk_bf16_f32 v%d, v%d, v%d" % (T, S[0] + 1, S[1] + 1))
    a("v_lshlrev_b32 v%d, 16, v%d" % (T + 1, T))
    a("v_and_b32 v%d, 0xffff0000, v%d" % (T + 2, T))
    a("v_sqrt_f32 v%d, v%d" % (T + 1, T + 1))
    a("v_sqrt_f32 v%d, v%d" % (T + 2, T + 2))
    a("v_cvt_pk_bf16_f32 v%d, v%d, v%d" % (T, T + 1, T + 2))
    a("v_lshlrev_b32 v%d, 16, v%d" % (T + 1, T))
    a("v_and_b32 v%d, 0xffff0000, v%d" % (T + 2, T))
    a("v_rcp_f32 v%d, v%d" % (S[0] + 1, T + 1))
    a("v_rcp_f32 v%d, v%d" % (S[1] + 1, T + 2))
    for i in range(2):
        a("v_cvt_pk_bf16_f32 v%d, v%d, v%d" % (T + 4 + 2 * i, S[i], S[i]))
        a("v_mov_b32 v%d, v%d" % (T + 5 + 2 * i, S[i] + 1))
    a("""
    s_lshl_b32 s60, s%d, 6
    s_lshl_b32 s61, s%d, 4
    s_add_u32 s60, s60, s61
    s_add_u32 s60, s60, 0x%x
    s_mov_b64 exec, 1
    """ % (S_LN, S_WV, WS_STATS))
    sb.vm("buffer_store_dwordx4 %s, off, s[%d:%d], s60 sc1" % (vr(T + 4, 4), SWS, SWS + 3), "st")
    a("s_mov_b64 exec, -1")
    a("s_mul_i32 s60, s%d, %d" % (S_WV, -2 * 1088))
    a("s_add_u32 s60, s60, %d" % (EXT + 6 * 1088))
    a("v_add_u32 v%d, s60, v%d" % (V + 9, V + 8))
    for i in range(2):
        for j in range(4):
            a("v_pk_add_f32 %s, %s, %s op_sel_hi:[1,0] neg_lo:[0,1] neg_hi:[0,1]" % (vr(D + 2 * j, 2), vr(F[i] + 2 * j, 2), vr(S[i], 2)))
        for j in range(4):
            a("v_cvt_pk_bf16_f32 v%d, v%d, v%d" % (T + j, D + 2 * j, D + 2 * j + 1))
        unpack(a, D, T, 4)
        for j in range(4):
            a("v_pk_mul_f32 %s, %s, %s op_sel:[0,1]" % (vr(D + 2 * j, 2), vr(D + 2 * j, 2), vr(S[i], 2)))
        for j in range(4):
            a("v_cvt_pk_bf16_f32 v%d, v%d, v%d" % (V + 4 * i + j, D + 2 * j, D + 2 * j + 1))
        sb.ds("ds_write_b128 v%d, %s offset:%d" % (V + 9, vr(V + 4 * i, 4), (1 - i) * 1088), "w")


def ln_part2(VA, VO, D):
    rd = [("ds", "ds_read_b64_tr_b16 %s, v%d offset:%d" % (vr(D + 4 * i + 2 * e, 2), VA, e * 4 * 1088 + i * 128), "ln")
          for i in range(2) for e in range(2)]
    st = [("vm", "buffer_store_dwordx4 %s, v%d, s[%d:%d], s61 offen offset:%d sc1" % (vr(D + 4 * i, 4), VO, SWS, SWS + 3, i * 1024), "st")
          for i in range(2)]
    return rd, st


def g_addresses(a):
    a("""
    v_bfe_u32 v2, v1, 4, 1
    v_lshrrev_b32 v3, 5, v1
    v_bfe_u32 v4, v1, 2, 2
    v_lshl_add_u32 v5, v3, 3, v4
    v_lshlrev_b32 v5, 7, v5
    v_lshl_add_u32 v5, v2, 13, v5
    v_lshrrev_b32 v6, 1, v4
    v_lshl_add_u32 v6, v2, 1, v6
    s_and_b32 s60, s%d, 1
    s_lshl_b32 s60, s60, 1
    s_lshr_b32 s61, s%d, 1
    s_or_b32 s60, s60, s61
    v_xor_b32 v6, s60, v6
    v_lshl_add_u32 v5, v6, 5, v5
    v_and_b32 v6, 3, v1
    v_lshl_add_u32 v5, v6, 3, v5
    v_add_u32 v%d, %d, v5
    v_xor_b32 v%d, 32, v%d
    v_mul_u32_u24 v4, 1088, v4
    v_lshl_add_u32 v4, v6, 3, v4
    v_lshrrev_b32 v6, 4, v1
    v_lshl_add_u32 v4, v6, 5, v4
    s_lshl_b32 s60, s%d, 8
    s_add_u32 s60, s60, %d
    v_add_u32 v9, s60, v4
    v_and_b32 v5, 31, v1
    v_bfe_u32 v4, v1, 1, 3
    v_xor_b32 v4, v3, v4
    v_lshlrev_b32 v4, 4, v4
    v_lshl_add_u32 v4, v5, 7, v4
    s_lshl_b32 s60, s61, 14
    v_add_u32 v%d, s60, v4
    """ % (S_WV, S_WV, RA, WSL[0], RA + 1, RA, S_WV, EXT, RB))
    for s in range(1, 4):
        a("v_xor_b32 v%d, %d, v%d" % (RB + s, 32 * s, RB))
    for s in range(4):
        a("v_add_u32 v%d, %d, v%d" % (RB2 + s, XS[2], RB + s))
    a("""
    v_bfe_u32 v4, v1, 2, 1
    v_cmp_eq_u32 vcc, v2, v4
    v_mov_b32 v4, 0x3f803f80
    v_cndmask_b32 v%d, 0, v4, vcc
    s_lshl_b32 s60, s61, 10
    v_add_u32 v%d, s60, v8
    v_xor_b32 v%d, 0x400, v%d
    """ % (SEL, VHS, VHS + 1, VHS))
    for i in range(1, 4):
        a("v_mov_b32 v%d, v%d" % (SEL + i, SEL))
    for r in (MB + 1, MB + 3, MB + 5, MB + 7, MB + 8, MB + 9, MA + 1, MA + 2, MA + 3, MA + 5, MA + 6, MA + 7):
        a("v_mov_b32 v%d, 0" % r)


def rd_a(stage, s, dst, tag):
    return [("ds", "ds_read_b64_tr_b16 %s, v%d offset:%d" % (vr(dst + 4 * t + 2 * e, 2), RA + t, (stage % 3) * 16384 + s * 2048 + e * 512), tag)
            for t in range(2) for e in range(2)]


def rd_b(stage, s, b, dst, tag):
    slot = stage % 3
    return ("ds", "ds_read_b128 %s, v%d offset:%d" % (vr(dst, 4), (RB2 if slot == 2 else RB) + s, (slot & 1) * 32768 + b * 4096), tag)


def mm(b, t, fa, fb, first=False):
    c = ACC + 16 * (2 * b + t)
    return "v_mfma_f32_32x32x16_bf16 %s, %s, %s, %s" % (vr(c, 16), vr(fa, 4), vr(fb, 4), "0" if first else vr(c, 16))


def side(fa, first=False):
    return "v_mfma_f32_16x16x32_bf16 %s, %s, %s, %s" % (vr(CS, 4), vr(SEL, 4), vr(fa, 4), "0" if first else vr(CS, 4))


def gaps(a, sb, seq, fill, cap):
    fill, i = list(fill), 0
    for x in seq:
        if isinstance(x, tuple):
            play(a, sb, [[x]])
            continue
        a(x)
        n = cap[i] if i < len(cap) else 0
        i += 1
        while n > 0 and fill:
            op = fill.pop(0)
            play(a, sb, [[op]])
            n -= op[0] != "need"
    return fill


def ops(text):
    return [("a", x.strip()) for x in text.strip().split("\n")]


def h_tile(b, t):
    c = ACC + 16 * (2 * b + t)
    L = [("a", "v_max_f32 v%d, 0, v%d" % (c + i, c + i)) for i in range(8)]
    L += [("a", "v_mul_f32 v%d, v%d, v%d" % (c + i, c + i, c + 8 + i)) for i in range(8)]
    L += [("a", "v_cvt_pk_bf16_f32 v%d, v%d, v%d" % (c + i, c + 2 * i, c + 2 * i + 1)) for i in range(4)]
    L += [("vm", "buffer_store_dwordx4 %s, v%d, s[%d:%d], s%d offen sc1" % (vr(c, 4), VHS + t, SWS, SWS + 3, S_HO), "st")]
    if t:
        L += [("a", "s_add_u32 s%d, s%d, %d" % (S_HO, S_HO, 112 * 1024))]
    return L


def g_main(a, sb):
    X, Y = SETS
    play(a, sb, [rd_a(0, 0, X, "f") + [rd_b(0, 0, b, X + 8 + 4 * b, "f") for b in range(4)]])
    for st in range(7):
        for s in range(4):
            f, g = SETS[s & 1], SETS[(s + 1) & 1]
            sb.need("lgkm", "f")
            extra = []
            if s == 3:
                if st == 1:
                    sb.drain("vm")
                a("s_barrier")
                stamp(a)
                if st == 4:
                    extra = [("a", "v_and_b32 v2, 31, v1"), ("a", "v_lshlrev_b32 v2, 3, v2")]
                    extra += [("vm", "buffer_load_dword v%d, v2, s[%d:%d], s63 offen offset:%d sc1" % (MB + 2 * b, SWS, SWS + 3, 256 * b), "m") for b in range(4)]
            if (st, s) == (0, 1):
                extra = ops("""
                s_lshl_b32 s60, s%d, 11
                s_lshr_b32 s61, s%d, 1
                s_lshl_b32 s62, s61, 10
                s_add_u32 s60, s60, s62
                s_add_u32 s63, s60, 0x%x
                s_lshl_b32 s60, s%d, 3
                s_lshl_b32 s61, s61, 2
                s_add_u32 s60, s60, s61
                s_mul_i32 s60, s60, 112""" % (S_RB, S_WV, WS_STATS, S_RB))
            if (st, s) == (0, 2):
                extra = ops("""
                s_lshl_b32 s61, s%d, 2
                s_add_u32 s60, s60, s61
                s_and_b32 s61, s%d, 1
                s_lshl_b32 s61, s61, 1
                s_add_u32 s60, s60, s61
                s_lshl_b32 s60, s60, 10
                s_add_u32 s%d, s60, 0x%x
                s_lshl_b32 s60, s%d, 8
                s_add_u32 s60, s60, %d
                v_lshl_add_u32 v9, v1, 2, s60
                v_xor_b32 v6, 0x200, v9""" % (S_FU, S_WV, S_HO, WS_H, S_WV, L_CS))
            first = st == 0 and s == 0
            mf = [mm(b, t, f + 4 * t, f + 8 + 4 * b, first) for b in range(4) for t in range(2)]
            mf.insert(5, side(f, first))
            if (st, s) == (6, 3):
                nxt = [x for q in range(4) for x in rd_a(7, q, FA7 + 8 * q, ("a", q))]
                nxt += [rd_b(7, q, 0, X + 4 * q, ("b", 0, q)) for q in range(4)]
                left = gaps(a, sb, mf, nxt, [3, 3, 3, 3, 2, 0, 2, 2, 2])
            else:
                ns, nq = (st, s + 1) if s < 3 else (st + 1, 0)
                nxt = rd_a(ns, nq, g, "f") + [rd_b(ns, nq, b, g + 8 + 4 * b, "f") for b in range(4)]
                left = gaps(a, sb, mf, nxt + extra, [2, 2, 2, 2, 4, 0, 4, 4, 4])
            assert not left, (st, s, left)
    fb = lambda b: (X, Y)[b & 1]
    seq = []
    for q in range(4):
        seq += [("need", "lgkm", [("a", q)]), side(FA7 + 8 * q)]
    main = lambda b: [x for q in range(4) for x in (("need", "lgkm", [("b", b, q)]), mm(b, 0, FA7 + 8 * q, fb(b) + 4 * q), mm(b, 1, FA7 + 8 * q + 4, fb(b) + 4 * q))]
    mean = lambda b: [mm(b, 0, MA, MB + 2 * b), mm(b, 1, MA + 4, MB + 2 * b)]
    nb = lambda b: [rd_b(7, q, b, fb(b) + 4 * q, ("b", b, q)) for q in range(4)]

    def split(c, dst):
        return ops("""
        v_cvt_pk_bf16_f32 v2, -v%d, -v%d
        v_and_b32 v3, 0xffff0000, v2
        v_add_f32 v5, v%d, v3
        v_cvt_pk_bf16_f32 v3, -v5, -v5
        v_and_b32 v4, 0xffff0000, v3
        v_add_f32 v5, v5, v4
        v_cvt_pk_bf16_f32 v4, -v5, 0
        v_alignbit_b32 v2, v3, v2, 16
        v_cndmask_b32 v%d, v4, v2, vcc""" % (c, c, c, dst))
    fill = nb(1) + [("a", "v_cmp_gt_u32 vcc, 32, v1"), ("ds", "ds_write_b32 v9, v%d" % CS, "cw")] + split(CS, MA)
    fill += [("need", "lgkm", "cw"), ("a", "s_barrier"), ("ds", "ds_read_b32 v%d, v6" % (CS + 1), "cr")]
    left = gaps(a, sb, seq + main(0), fill, [0, 0, 0, 0, 2, 2, 2, 4, 4, 1, 2, 0])
    assert not left, left
    stamp(a)
    m1 = main(1)
    fill = [("need", "lgkm", "cr")] + split(CS + 1, MA + 4) + nb(2) + h_tile(0, 0) + h_tile(0, 1)
    left = gaps(a, sb, m1[:6] + [("need", "vm", "m")] + mean(0) + m1[6:] + mean(1), fill, [0, 5, 4, 0, 2, 2, 0, 0, 5, 5, 5, 5])
    left = gaps(a, sb, main(2) + mean(2), nb(3) + left + h_tile(1, 0) + h_tile(1, 1), [5] * 10)
    sb.need("lgkm", [("b", 3, 3)])
    a("s_barrier")
    stamp(a)
    left = gaps(a, sb, main(3) + mean(3), left + h_tile(2, 0) + h_tile(2, 1), [5] * 10)
    play(a, sb, [left + h_tile(3, 0) + h_tile(3, 1)])


def spare_issue(a):
    srd(a, SW, P_WD, 1792 * 512 * 2)
    a("""
    s_lshl_b32 s60, s%d, 2
    s_add_u32 s60, s60, s%d
    s_sub_u32 s%d, s60, 28
    s_cmp_ge_u32 s%d, 28
    s_cselect_b32 s%d, 0, s%d
    s_lshl_b32 s60, s%d, 16
    s_lshl_b32 s61, s%d, 14
    s_add_u32 s60, s60, s61
    s_mul_i32 s77, s%d, %d
    s_cmp_eq_u32 s%d, 3
    s_cselect_b32 s77, %d, s77
    """ % (S_XCD, S_LOC, S_FU, S_FU, SW + 2, SW + 2, S_FU, S_WV, S_WV, 16 * 1088, S_WV, WSL[0]))
    for i in range(16):
        a("s_add_u32 m0, s77, %d" % (i * 1088))
        a("s_add_u32 s61, s60, %d" % (i * 1024))
        a("buffer_load_dwordx4 v8, s[%d:%d], s61 offen lds" % (SW, SW + 3))


def spare_job(a):
    sb = Sb(a)
    a("""
    v_bfe_u32 v2, v1, 2, 2
    v_lshrrev_b32 v3, 5, v1
    v_lshl_add_u32 v2, v3, 2, v2
    v_mul_u32_u24 v2, 1088, v2
    v_and_b32 v3, 3, v1
    v_lshl_add_u32 v2, v3, 3, v2
    v_bfe_u32 v3, v1, 4, 1
    v_lshl_add_u32 v2, v3, 5, v2
    v_add_u32 v2, s77, v2
    s_lshl_b32 s60, s%d, 2
    s_add_u32 s60, s60, s%d
    s_lshl_b32 s63, s60, 6
    s_add_u32 s63, s63, 0x%x
    s_lshl_b32 s60, s60, 10
    s_add_u32 s60, s60, 0x%x
    v_mov_b32 v3, s%d
    s_cmp_ge_u32 s%d, 28
    s_cselect_b32 s%d, 0, s%d
    s_waitcnt vmcnt(3)
    """ % (S_FU, S_WV, WS_WF, WS_WDF, S_TAG, S_FU, SWS + 2, SWS + 2))
    stamp(a)
    R = 64

    def put(k):
        sb.need("lgkm", "t%d" % k)
        a("s_add_u32 s61, s60, %d" % (k * 112 * 1024))
        sb.vm("buffer_store_dwordx4 %s, v8, s[%d:%d], s61 offen sc1" % (vr(R + 4 * k, 4), SWS, SWS + 3), "st")
    for dt in range(16):
        for e in range(2):
            sb.ds("ds_read_b64_tr_b16 %s, v2 offset:%d" % (vr(R + 4 * dt + 2 * e, 2), e * 8 * 1088 + 64 * dt), "t%d" % dt)
        if dt >= 3:
            put(dt - 3)
    for k in range(13, 16):
        put(k)
    stamp(a)
    a("s_barrier\ns_waitcnt vmcnt(16)\ns_barrier")
    sb.drain("vm")
    stamp(a)
    r = Rec(); post(r, 3, 63); play(a, sb, r.items)
    a("s_mov_b32 s%d, 0x1000000" % (SWS + 2))
    for _ in range(3):
        a("s_barrier")
    stamp(a)
    if OPT["sppf"]:
        a("""
        s_sub_u32 s60, s%d, 28
        s_lshl_b32 s60, s60, 2
        s_add_u32 s60, s60, s%d
        s_mul_i32 s60, s60, %d
        s_add_u32 s60, s60, 0x%x
        v_lshlrev_b32 v2, 7, v1
        """ % (S_LOC, S_WV, 112 * 1024, WS_WDF))
        for i in range(7):
            a("buffer_load_dword v3, v2, s[%d:%d], s60 offen sc1\ns_add_u32 s60, s60, 8192" % (SWS, SWS + 3))
    for _ in range(4):
        a("s_barrier")
    a("s_waitcnt vmcnt(0)")


WD, ACC2, RING = 144, 80, 32
VH, VW = 28, 30


def g2_setup(a):
    a("""
    s_lshl_b32 s60, s%d, 2
    s_lshr_b32 s61, s%d, 3
    s_add_u32 s%d, s60, s61
    s_and_b32 s%d, s%d, 7
    s_mul_i32 s60, s%d, 14
    s_mul_i32 s61, s%d, 224
    s_add_u32 s61, s61, s60
    s_lshl_b32 s61, s61, 10
    s_add_u32 s61, s61, 0x%x
    v_lshl_add_u32 v%d, v1, 4, s61
    v_add_u32 v%d, %d, v%d
    s_mul_i32 s61, s%d, 224
    s_add_u32 s61, s61, s60
    s_lshl_b32 s61, s61, 10
    s_add_u32 s61, s61, 0x%x
    v_lshl_add_u32 v%d, v1, 4, s61
    v_add_u32 v%d, %d, v%d
    s_and_b32 s60, s%d, 3
    s_lshl_b32 s60, s60, 1
    s_add_u32 s60, s60, s%d
    s_sub_u32 s61, s60, 7
    s_cselect_b32 s60, s60, s61
    s_lshl_b32 s60, s60, 11
    """ % (S_XCD, S_LOC, S_R, S_CB, S_LOC, S_W8, S_R, WS_H, VH, VH + 1, 112 * 1024, VH,
           S_CB, WS_WDF, VW, VW + 1, 112 * 1024, VW, S_R, S_CB))
    for g in range(7):
        a("s_add_u32 s61, s60, %d\ns_sub_u32 s62, s61, %d\ns_cselect_b32 s%d, s61, s62" % (2048 * g, 7 * 2048, S_GRP + g))


def wd_loads():
    return ["buffer_load_dwordx4 %s, v%d, s[%d:%d], s%d offen offset:%d sc1" % (vr(WD + 8 * i + 4 * dt, 4), VW + dt, SWS, SWS + 3, S_GRP + (i >> 1), 1024 * (i & 1))
            for i in range(14) for dt in range(2)]


def h_flag_addr(a, v, last):
    a("""
    s_lshr_b32 s60, s%d, 1
    s_mul_i32 s60, s60, 56
    s_mul_i32 s61, s%d, 7
    s_add_u32 s60, s60, s61
    v_min_u32 v%d, %d, v1
    """ % (S_R, S_W8, v, last))
    if last > 6:
        a("v_cmp_lt_u32 vcc, 6, v1\nv_cndmask_b32 v64, 0, 21, vcc\nv_add_u32 v%d, v%d, v64" % (v, v))
    a("""
    v_add_u32 v%d, s60, v%d
    v_lshlrev_b32 v%d, 7, v%d
    v_add_u32 v%d, 0x%x, v%d
    """ % (v, v, v, v, v, WS_HF, v))


def g2_stream(a, sb, depth, nslot, hooks, touch=None):
    def ld(i):
        tb, k = divmod(i, 14)
        sb.vm("buffer_load_dwordx4 %s, v%d, s[%d:%d], s%d offen offset:%d sc1" %
              (vr(RING + 4 * (i % nslot), 4), VH + tb, SWS, SWS + 3, S_GRP + (k >> 1), 1024 * (k & 1)), ("h", i))
    nxt = 0
    for i in range(28):
        while nxt < 28 and nxt < i + depth(i) and nxt < i + nslot:
            ld(nxt); nxt += 1
            if nxt == 2 and touch:
                sb.vm(touch, "touch")
        tb, k = divmod(i, 14)
        sb.need("vm", [("h", i)])
        for dt in range(2):
            c = ACC2 + 32 * tb + 16 * dt
            a("v_mfma_f32_32x32x16_bf16 %s, %s, %s, %s" % (vr(c, 16), vr(RING + 4 * (i % nslot), 4), vr(WD + 8 * k + 4 * dt, 4), vr(c, 16) if k else "0"))
        if i in hooks:
            hooks[i]()


def put_tid(r, tb, region):
    base = min(region, 65536 - 4 * RWAVE)
    r("s_mul_i32 s60, s%d, %d\ns_add_u32 m0, s60, %d" % (S_WV, RWAVE, base))
    for i in range(32):
        r.ds("ds_write_addtid_b32 v%d offset:%d" % (ACC2 + 32 * tb + i, region - base + RPITCH * i), "put")


def spread(a, sb, items, first, last):
    n = last - first + 1
    return {first + j: (lambda part=items[j * len(items) // n:(j + 1) * len(items) // n]: play(a, sb, part)) for j in range(n)}


SD = 8


def g_tail(a, sb):
    g2_setup(a)
    wl = wd_loads()
    for x in wl[:8]:
        sb.vm(x, "wd")
    a("""
    s_lshl_b32 s60, s%d, 1
    s_lshr_b32 s61, s%d, 1
    s_add_u32 s60, s60, s61
    s_mul_i32 s60, s60, 56
    s_lshl_b32 s61, s%d, 1
    s_add_u32 s60, s60, s61
    s_and_b32 s61, s%d, 1
    s_add_u32 s60, s60, s61
    s_lshl_b32 s60, s60, 7
    s_add_u32 s77, s60, 0x%x
    v_mov_b32 v6, s%d
    """ % (S_RB, S_WV, S_FU, S_WV, WS_HF, S_TAG))
    srd(a, SO, P_OUT, 2048 * 512 * 2)
    V = SD
    a("""
    v_bfe_u32 v2, v1, 3, 1
    v_bfe_u32 v3, v1, 4, 1
    v_lshl_add_u32 v2, v3, 2, v2
    v_lshrrev_b32 v3, 5, v1
    v_lshl_add_u32 v2, v3, 1, v2
    s_lshl_b32 s60, s%d, 6
    s_lshl_b32 s61, s%d, 3
    s_add_u32 s60, s60, s61
    v_add_u32 v3, s60, v2
    v_and_b32 v4, 7, v1
    v_lshlrev_b32 v4, 4, v4
    s_lshl_b32 s60, s%d, 7
    v_add_u32 v4, s60, v4
    v_lshl_add_u32 v%d, v3, 10, v4
    v_lshlrev_b32 v5, 3, v3
    """ % (S_R, S_WV, S_CB, V + 16))
    a("""
    v_and_b32 v3, 3, v2
    s_lshl_b32 s60, s%d, 2
    v_add_u32 v3, s60, v3
    v_bfe_u32 v64, v1, 2, 1
    v_lshl_add_u32 v3, v64, 4, v3
    v_mul_u32_u24 v3, %d, v3
    v_lshrrev_b32 v64, 2, v2
    v_lshl_add_u32 v3, v64, 7, v3
    v_and_b32 v64, 3, v1
    v_lshl_add_u32 v%d, v64, 5, v3
    s_lshl_b32 s60, s%d, 1
    v_lshrrev_b32 v3, 2, v2
    v_add_u32 v3, s60, v3
    v_and_b32 v64, 7, v1
    v_xor_b32 v3, v3, v64
    v_lshlrev_b32 v3, 4, v3
    v_lshl_add_u32 v3, v64, 10, v3
    v_and_b32 v64, 3, v2
    v_lshl_add_u32 v3, v64, 2, v3
    v_add_u32 v%d, %d, v3
    """ % (S_WV, RPITCH, V + 17, S_WV, V + 18, L_YI))
    h_flag_addr(a, 27, 13 if OPT["touch"] else 6)
    a("s_cmp_lt_u32 s%d, 28\ns_cselect_b64 s[26:27], 1, 0" % S_LOC)
    sb.need("vm", "st")
    stamp(a)
    a("s_mov_b64 exec, s[26:27]")
    sb.vm("buffer_store_dword v6, off, s[%d:%d], s77 sc1" % (SWS, SWS + 3), "flag")
    a("s_mov_b64 exec, -1")
    for x in wl[8:]:
        sb.vm(x, "wd")
    a("s_mov_b32 s60, 32768\ns_mov_b32 s61, 0x%x" % WS_STATS)
    sb.vm("buffer_load_dwordx4 %s, v%d, s[%d:%d], 0 offen" % (vr(V, 4), V + 16, SX, SX + 3), "side")
    sb.vm("buffer_load_dwordx4 %s, v%d, s[%d:%d], s60 offen" % (vr(V + 4, 4), V + 16, SX, SX + 3), "side")
    sb.vm("buffer_load_dwordx2 %s, v5, s[%d:%d], s61 offen sc1" % (vr(V + 8, 2), SWS, SWS + 3), "side")
    sb.vm("buffer_load_dwordx2 %s, v5, s[%d:%d], s61 offen offset:256 sc1" % (vr(V + 10, 2), SWS, SWS + 3), "side")
    sb.vm("global_load_dwordx4 %s, v4, s[%d:%d]" % (vr(V + 12, 4), P_DSK, P_DSK + 1), "side")
    poll = "buffer_load_dword v2, v27, s[%d:%d], 0 offen sc1" % (SWS, SWS + 3)
    sb.vm(poll, "poll")
    a("""
    s_lshr_b32 s60, s%d, 3
    s_lshl_b32 s60, s60, 8
    s_lshl_b32 s61, s%d, 5
    s_add_u32 s60, s60, s61
    v_and_b32 v5, 31, v1
    v_add_u32 v5, s60, v5
    v_lshlrev_b32 v5, 5, v5
    v_add_u32 v5, 0x%x, v5
    v_lshrrev_b32 v3, 4, v1
    v_and_b32 v4, 15, v1
    s_lshl_b32 s60, s%d, 1
    v_xor_b32 v4, s60, v4
    v_lshlrev_b32 v4, 4, v4
    v_lshl_add_u32 v3, v3, 13, v4
    v_xor_b32 v4, 16, v3
    v_add_u32 v4, 0x8000, v4
    s_lshl_b32 s60, s%d, 18
    s_lshl_b32 s61, s%d, 16
    s_add_u32 s60, s60, s61
    s_lshl_b32 s61, s%d, 8
    s_add_u32 s60, s60, s61
    s_add_u32 s77, s60, 0x%x
    s_lshl_b32 s61, s%d, 11
    s_add_u32 s61, s61, %d
    v_lshl_add_u32 v6, v1, 4, s61
    """ % (S_R, S_CB, WS_YF, S_WV, S_CB, S_WV, S_R, WS_Y, S_WV, L_YI))
    if OPT["touch"]:
        a("""
        v_lshrrev_b32 v80, 4, v1
        v_add_u32 v80, 1, v80
        v_and_b32 v81, 1, v80
        v_mul_u32_u24 v81, %d, v81
        v_bfe_u32 v80, v80, 1, 1
        v_mul_u32_u24 v80, %d, v80
        v_and_b32 v82, 15, v1
        v_mul_u32_u24 v82, 128, v82
        v_add3_u32 v80, v80, v81, v82
        v_lshlrev_b32 v81, 4, v1
        v_sub_u32 v80, v80, v81
        v_add_u32 v%d, v80, v%d
        """ % (112 * 1024, 56 * 1024, VW, VH))
    sb.drain("vm")
    stamp(a)
    B = (64, 72)
    for tb in range(2):
        X, st = ACC2, V + 8 + 2 * tb
        unpack(a, X, V + 4 * tb, 4)
        unpack(a, B[tb], V + 12, 4)
        a("v_and_b32 v%d, 0xffff0000, v%d" % (st, st))
        for j in range(8):
            a("v_mul_f32 v%d, v%d, v%d" % (B[tb] + j, B[tb] + j, st + 1))
            a("v_sub_f32 v%d, v%d, v%d" % (X + 8, X + j, st))
            a("v_fma_f32 v%d, v%d, v%d, v%d" % (B[tb] + j, B[tb] + j, X + 8, X + j))
        a("v_mul_f32 v%d, v%d, v%d" % (st + 1, st + 1, st + 1))
    spin(a, "L_gh", [poll], [2])
    stamp(a)
    ypoll = "buffer_load_dword v2, v5, s[%d:%d], 0 offen sc1" % (SWS, SWS + 3)
    r = Rec(); put_tid(r, 0, L_G0)
    hooks = spread(a, sb, r.items, 15, 22)
    hooks[24] = lambda: sb.vm(ypoll, "ypoll")
    touch = "buffer_load_dword v27, v%d, s[%d:%d], s%d offen sc1" % (VW, SWS, SWS + 3, S_GRP)
    g2_stream(a, sb, lambda i: 8, 8, hooks, touch if OPT["touch"] else None)
    stamp(a)
    sb.need("vm", "ypoll")
    spin(a, "L_gy", [ypoll], [2])
    YR = V
    sb.vm("buffer_load_dwordx4 %s, v3, s[%d:%d], s77 offen sc1" % (vr(YR, 4), SWS, SWS + 3), "y")
    sb.vm("buffer_load_dwordx4 %s, v4, s[%d:%d], s77 offen sc1" % (vr(YR + 4, 4), SWS, SWS + 3), "y")
    a("s_nop 4")
    r = Rec(); put_tid(r, 1, L_G1); play(a, sb, r.items)
    a("s_lshl_b32 s60, s%d, 2\ns_add_u32 s60, s60, %d\nv_mov_b32 v3, s60\nv_mov_b32 v4, %d\nv_mov_b32 v5, -1" % (S_WV, L_FLG, L_FLG))
    sb.need("vm", "y")
    sb.ds("ds_write_b128 v6, %s" % vr(YR, 4), "put")
    sb.ds("ds_write_b128 v6, %s offset:1024" % vr(YR + 4, 4), "put")
    sb.drain("lgkm")
    a("ds_write_b32 v3, v5 offset:32")
    stamp(a)
    lds_wait(a, "L_gw", 4, RING, (1, 2))
    stamp(a)
    T = WD

    def reads(region, dst, tag, vaddr):
        for q in range(4):
            for h in range(2):
                sb.ds("ds_read_b128 %s, v%d offset:%d" % (vr(dst + 8 * q + 4 * h, 4), vaddr, region + RWAVE * q + 16 * h), tag)

    def fold(dst, n):
        while n > 1:
            n //= 2
            for q in range(n):
                for j in range(8):
                    a("v_add_f32 v%d, v%d, v%d" % (dst + 8 * q + j, dst + 8 * q + j, dst + 8 * (q + n) + j))
    a("v_add_u32 v2, %d, v%d\nv_add_u32 v3, %d, v%d" % (L_G1, V + 17, L_H0, V + 17))
    for tb in range(2):
        for i in range(4):
            sb.ds("ds_read_b32 v%d, v%d offset:%d" % (RING + 4 * tb + i, V + 18, 256 * i + 128 * tb), "yr")
    reads(L_G0, T, "p0", V + 17)
    sb.need("lgkm", "yr")
    reads(0, T + 32, "p1", 3)
    for tb in range(2):
        unpack(a, RING + 8, RING + 4 * tb, 4)
        for j in range(8):
            a("v_add_f32 v%d, v%d, v%d" % (B[tb] + j, B[tb] + j, RING + 8 + j))
    sb.need("lgkm", "p0")
    reads(0, T + 64, "p2", 2)
    sb.need("lgkm", "p1")
    fold(T, 8)
    for j in range(8):
        a("v_fma_f32 v%d, v%d, v%d, v%d" % (T + j, T + j, V + 9, B[0] + j))
    for j in range(4):
        a("v_cvt_pk_bf16_f32 v%d, v%d, v%d" % (T + 8 + j, T + 2 * j, T + 2 * j + 1))
    sb.vm("buffer_store_dwordx4 %s, v%d, s[%d:%d], 0 offen" % (vr(T + 8, 4), V + 16, SO, SO + 3), "st")
    sb.need("lgkm", "p2")
    fold(T + 64, 4)
    for j in range(8):
        a("v_fma_f32 v%d, v%d, v%d, v%d" % (B[1] + j, T + 64 + j, V + 11, B[1] + j))
    a("s_mov_b32 s60, 32768")
    stamp(a)
    a("s_barrier")
    stamp(a)
    for q in range(4):
        for h in range(2):
            sb.ds("ds_read_b128 %s, v%d offset:%d" % (vr(T + 16 + 8 * q + 4 * h, 4), V + 17, L_H1 + RWAVE * q + 16 * h), "q%d" % (q >> 1))
    for q in (0, 2):
        sb.need("lgkm", "q%d" % (q >> 1))
        for j in range(4):
            c = T + 16 + 8 * q + 2 * j
            a("v_pk_add_f32 %s, %s, %s" % (vr(c, 2), vr(c, 2), vr(c + 8, 2)))
    for j in range(4):
        c = T + 16 + 2 * j
        a("v_pk_add_f32 %s, %s, %s" % (vr(c, 2), vr(c, 2), vr(c + 16, 2)))
    for j in range(4):
        c = T + 16 + 2 * j
        a("v_pk_fma_f32 %s, %s, %s, %s op_sel:[0,1,0]" % (vr(c, 2), vr(c, 2), vr(V + 10, 2), vr(B[1] + 2 * j, 2)))
    for j in range(4):
        a("v_cvt_pk_bf16_f32 v%d, v%d, v%d" % (T + 64 + j, T + 16 + 2 * j, T + 17 + 2 * j))
    sb.vm("buffer_store_dwordx4 %s, v%d, s[%d:%d], s60 offen" % (vr(T + 64, 4), V + 16, SO, SO + 3), "st")


def g_waves(a):
    sb = Sb(a)
    V = 48
    a("L_G:")
    if OPT["probe"]:
        a("s_memrealtime s[96:97]")
    ln_block(a)
    a("""
    s_lshl_b32 s62, s%d, 13
    s_lshl_b32 s61, s%d, 11
    s_add_u32 s62, s62, s61
    v_lshlrev_b32 v8, 4, v1
    s_waitcnt lgkmcnt(0)
    """ % (S_LN, S_WV))
    descriptors(a)
    a("buffer_load_dwordx4 %s, v8, s[%d:%d], s62 offen" % (vr(V, 4), SX, SX + 3))
    a("buffer_load_dwordx4 %s, v8, s[%d:%d], s62 offen offset:1024" % (vr(V + 4, 4), SX, SX + 3))
    stamp_init(a)
    roles(a)
    g_addresses(a)
    make_tag(a)
    a("v_mov_b32 v%d, v8" % (V + 8))
    a("s_cmp_ge_u32 s%d, 28\ns_cbranch_scc1 L_sp_issue\ns_waitcnt vmcnt(0)\nL_ln_go:" % S_LOC)
    stamp(a)
    ln_part1(a, sb, V)
    a("""
    s_lshl_b32 s60, s%d, 13
    s_lshl_b32 s61, s%d, 11
    s_add_u32 s60, s60, s61
    s_add_u32 s61, s60, 0x%x
    """ % (S_LN, S_WV, WS_XNB))
    sb.drain("lgkm")
    stamp(a)
    a("s_barrier")
    ln_rd, ln_st = ln_part2(9, 8, FA7)
    play(a, sb, [ln_rd, [("need", "lgkm", "ln")], ln_st])
    stamp(a)
    a("s_cmp_ge_u32 s%d, 28\ns_barrier\ns_cbranch_scc1 L_sp_job" % S_LOC)
    stamp(a)
    g_main(a, sb)
    a("L_g_tail:")
    stamp(a)
    g_tail(a, sb)
    if OPT["probe"]:
        a("""
        s_waitcnt vmcnt(0)
        s_memrealtime s[98:99]
        s_waitcnt lgkmcnt(0)
        s_sub_u32 s97, s98, s96
        s_mul_i32 s97, s97, %d
        s_add_u32 s97, s97, s98
        L_probe:
        s_memrealtime s[98:99]
        s_waitcnt lgkmcnt(0)
        s_sub_u32 s99, s98, s97
        s_cmp_lt_i32 s99, 0
        s_cbranch_scc1 L_probe
        """ % OPT["probe"])
    stamp_flush(a)
    a("s_endpgm")
    a("L_sp_issue:")
    spare_issue(a)
    a("s_waitcnt vmcnt(16)\ns_branch L_ln_go")
    a("L_sp_job:")
    spare_job(a)
    a("s_branch L_g_tail")


DX, DW = 8, 16
PR, Z8, Z1, Z256, Z16, Z2, AR, CB, KT = 24, 30, 32, 34, 36, 38, 40, 42, 50
KAD, KRD = 20, 22
PKE, PKG, FE, FG, KD = 64, 96, 144, 176, 208


def h_offsets(a):
    a("""
    v_lshrrev_b32 v2, 3, v1
    v_and_b32 v3, 7, v1
    v_lshrrev_b32 v4, 4, v1
    v_xor_b32 v5, v3, v4
    v_lshlrev_b32 v5, 4, v5
    v_lshl_add_u32 v5, v2, 10, v5
    s_lshl_b32 s60, s%d, 18
    s_lshl_b32 s61, s%d, 16
    s_add_u32 s60, s60, s61
    v_add_u32 v5, s60, v5
    """ % (S_RB, S_WV))
    for i in range(8):
        a("v_add_u32 v%d, %d, v5" % (DX + i, i * 8192 - (i & 3) * 1024))
        if i & 1:
            a("v_xor_b32 v%d, 64, v%d" % (DX + i, DX + i))
    a("""
    s_lshr_b32 s60, s%d, 1
    s_lshl_b32 s60, s60, 2
    v_bfe_u32 v4, v1, 4, 1
    v_lshl_add_u32 v4, v4, 1, s60
    v_xor_b32 v4, v3, v4
    v_lshlrev_b32 v4, 4, v4
    v_mul_u32_u24 v5, 3584, v2
    v_add_u32 v5, v5, v4
    s_and_b32 s60, s%d, 1
    s_mul_i32 s60, s60, %d
    s_lshl_b32 s61, s%d, 7
    s_add_u32 s60, s60, s61
    v_add_u32 v5, s60, v5
    """ % (S_WV, S_WV, 32 * 3584, S_FU))
    for i in range(4):
        a("v_add_u32 v%d, %d, v5" % (DW + i, i * 8 * 3584 - i * 1024))
    a("""
    s_add_u32 s%d, s%d, s%d
    s_lshl_b32 s60, s%d, 13
    s_lshl_b32 s61, s%d, 12
    s_cmp_lt_u32 s%d, 28
    s_cselect_b32 s62, -1, 0
    s_cselect_b32 s63, 0, %d
    """ % (S_ORD, S_RB, S_FU, S_WV, S_WV, S_LOC, 102400))
    for sl in range(3):
        for j, (base, reg) in enumerate(((XS[sl], 60), (XS[sl] + 4096, 60), (WSL[sl], 61))):
            d = S_M0 + 3 * sl + j
            a("s_add_u32 s%d, s%d, %d\ns_and_b32 s%d, s%d, s62\ns_or_b32 s%d, s%d, s63" % (d, reg, base, d, d, d, d))


def dma(stage):
    r = Rec()
    sl = stage % 3
    rot = OPT["rot"]
    with r.group():
        if rot == 1:
            r("s_mov_b32 s%d, %d\ns_mov_b32 s%d, %d" % (S_KX, 128 * stage, S_KW, 64 * 3584 * stage))
        else:
            r("s_add_u32 s%d, s%d, %d\ns_and_b32 s%d, s%d, %d" % (S_KW, S_ORD, stage, S_KW, S_KW, rot - 1))
            if stage & ~(rot - 1):
                r("s_or_b32 s%d, s%d, %d" % (S_KW, S_KW, stage & ~(rot - 1)))
            r("s_lshl_b32 s%d, s%d, 7\ns_mul_i32 s%d, s%d, %d" % (S_KX, S_KW, S_KW, S_KW, 64 * 3584))
    for j in range(3):
        for i in range(4):
            with r.group():
                if i == 0:
                    r("s_mov_b32 m0, s%d" % (S_M0 + 3 * sl + j))
                v, d, k = (DX + 4 * j + i, SX, S_KX) if j < 2 else (DW + i, SW, S_KW)
                r.vm("buffer_load_dwordx4 v%d, s[%d:%d], s%d offen offset:%d %s lds" % (v, d, d + 3, k, 1024 * i, OPT["xnt" if j < 2 else "wnt"]), ("S", stage))
    return r.items


def kg_issue(a, sb):
    a("""
    s_lshl_b32 s%d, s%d, 5
    s_add_u32 s%d, s%d, s%d
    s_lshl_b32 s60, s%d, 9
    v_lshl_add_u32 v6, v0, 1, s60
    s_lshl_b32 s60, s%d, 2
    s_load_dword s%d, s[%d:%d], s60
    """ % (S_P, S_XCD, S_P, S_P, S_LOC, S_P, S_P, S_LDT, P_LDT, P_LDT + 1))
    for i, p in enumerate((P_ARE, P_AIM, P_BRE, P_BIM, P_CRE, P_CIM)):
        sb.vm("global_load_ushort v%d, v6, s[%d:%d]" % (PR + i, p, p + 1), "kp")


def kg_addresses(r):
    r("""
    s_lshl_b32 s60, s%d, 12
    s_add_u32 s60, s60, %d
    v_bfe_u32 v2, v1, 2, 2
    v_lshlrev_b32 v3, 4, v2
    v_lshl_add_u32 v3, v1, 6, v3
    v_add_u32 v%d, s60, v3
    v_lshrrev_b32 v3, 5, v1
    v_lshl_add_u32 v2, v3, 3, v2
    v_lshlrev_b32 v2, 6, v2
    v_bfe_u32 v4, v1, 4, 1
    v_xor_b32 v3, v3, v4
    v_bfe_u32 v4, v1, 1, 1
    v_lshl_add_u32 v3, v3, 1, v4
    v_lshl_add_u32 v2, v3, 4, v2
    v_and_b32 v3, 1, v1
    v_lshl_add_u32 v2, v3, 3, v2
    v_add_u32 v%d, s60, v2
    v_xor_b32 v%d, 16, v%d
    """ % (S_WV, EXT, KAD, KRD, KRD + 1, KRD))


def kg_transpose(r, src, n, dst):
    for p in range(n):
        if p:
            r("v_xor_b32 v2, %d, v%d" % (16 * p, KAD))
        r.ds("ds_write_b128 v%d, %s" % (2 if p else KAD, vr(src + 4 * p, 4)), "kw")
    for k in range(4):
        for e in range(2):
            r.ds("ds_read_b64_tr_b16 %s, v%d offset:%d" % (vr(dst + 4 * k + 2 * e, 2), KRD + e, k * 1024 + e * 256), "kf")


def kg_front(r):
    T = KT
    r("""
    s_lshr_b32 s60, s%d, 1
    s_lshl_b32 s60, s60, 4
    s_lshr_b32 s60, s%d, s60
    s_lshl_b32 s60, s60, 16
    v_mov_b32 v%d, 0x%x
    v_mul_f32 v%d, s60, v%d
    v_exp_f32 v%d, v%d
    v_cvt_pk_bf16_f32 v%d, v%d, v%d
    v_and_b32 v%d, 0xffff0000, v%d
    """ % (S_WV, S_LDT, T, LOG2E, T, T, T, T, T, T, T, T, T))
    r.need("vm", "kp")
    for i in range(6):
        r("v_lshlrev_b32 v%d, 16, v%d" % (PR + i, PR + i))
    r("v_pk_mul_f32 %s, %s, %s op_sel_hi:[1,0]" % (vr(AR, 2), vr(PR, 2), vr(T, 2)))
    r("v_pk_mul_f32 %s, %s, %s op_sel_hi:[1,0]" % (vr(PR + 2, 2), vr(PR + 2, 2), vr(T, 2)))
    zs = ((Z8, 8), (Z1, 1), (Z256, 256))
    for k, (z, l) in enumerate(zs):
        r("v_mul_f32 v%d, 0x%x, v%d" % (T + 2 * k, f2u(l * math.log2(math.e)), AR))
        r("v_mul_f32 v%d, 0x%x, v%d" % (T + 2 * k + 1, f2u(l / (2 * math.pi)), AR + 1))
    for k, (z, l) in enumerate(zs):
        r("v_fract_f32 v%d, v%d\nv_exp_f32 v%d, v%d" % (T + 2 * k + 1, T + 2 * k + 1, T + 2 * k, T + 2 * k))
    for k, (z, l) in enumerate(zs):
        r("v_cos_f32 v%d, v%d\nv_sin_f32 v%d, v%d" % (z, T + 2 * k + 1, z + 1, T + 2 * k + 1))
    cmul(r, CB, PR + 4, PR + 2)
    for k, (z, l) in enumerate(zs):
        r("v_pk_mul_f32 %s, %s, %s op_sel_hi:[1,0]" % (vr(z, 2), vr(z, 2), vr(T + 2 * k, 2)))
    cmul_n(r, [(Z16, Z8, Z8), (Z2, Z1, Z1)])
    e0, e1, n0, n1 = T, T + 2, T + 4, T + 6
    r("v_cvt_pk_bf16_f32 v%d, 1.0, v%d\nv_cvt_pk_bf16_f32 v%d, 0, v%d" % (PKE, Z8, PKE + 16, Z8 + 1))
    cmul(r, e1, Z8, Z16)
    cur0, cur1 = Z16, e1
    for j in range(1, 16):
        if j < 15:
            cmul_n(r, [(n0, cur0, Z16), (n1, cur1, Z16)])
        r("v_cvt_pk_bf16_f32 v%d, v%d, v%d" % (PKE + j, cur0, cur1))
        r("v_cvt_pk_bf16_f32 v%d, v%d, v%d" % (PKE + 16 + j, cur0 + 1, cur1 + 1))
        cur0, cur1 = n0, n1
        e0, e1, n0, n1 = n0, n1, e0, e1
    g = [CB] + [FE + 2 * i for i in range(20)]
    cmul_n(r, [(g[1], g[0], Z1), (g[2], g[0], Z2), (g[8], g[0], Z256)])
    cmul_n(r, [(g[3], g[1], Z2), (g[4], g[2], Z2), (g[12], g[8], Z256), (g[9], g[2], Z256)])
    cmul_n(r, [(g[5], g[3], Z2), (g[6], g[4], Z2), (g[14], g[12], Z256), (g[10], g[4], Z256)])
    cmul_n(r, [(g[7], g[5], Z2), (g[11], g[6], Z256), (g[16], g[14], Z256), (g[13], g[10], Z256)])
    cmul_n(r, [(g[15], g[13], Z256), (g[17], g[16], Z256)])
    for k in (18, 19, 20):
        cmul(r, g[k], g[k - 1], Z256)


def kg_pack_rows(r):
    g = [CB] + [FE + 2 * i for i in range(20)]
    for j in range(11):
        hi = g[2 * j + 1] if j < 10 else g[20]
        r("v_cvt_pk_bf16_f32 v%d, v%d, v%d" % (PKG + j, g[2 * j], hi))
        r("v_cvt_pk_bf16_f32 v%d, -v%d, -v%d" % (PKG + 12 + j, g[2 * j] + 1, hi + 1))
    r("v_mov_b32 v%d, 0\nv_mov_b32 v%d, 0" % (PKG + 11, PKG + 23))


def kg_product(r):
    with r.group():
        r("s_setprio 1")
        for k in range(8):
            r("v_mfma_f32_32x32x16_bf16 %s, %s, %s, %s" % (vr(KD, 16), vr(FG + 4 * k, 4), vr(FE + 4 * k, 4), vr(KD, 16) if k else "0"))
        r("s_setprio 0")


def kg_exchange(r):
    r("""
    s_lshr_b32 s60, s%d, 1
    s_lshl_b32 s60, s60, 13
    s_add_u32 s60, s60, %d
    s_and_b32 s61, s%d, 1
    s_mul_i32 s61, s61, 5120
    s_add_u32 s62, s60, s61
    v_lshl_add_u32 v%d, v1, 4, s62
    s_sub_u32 s62, s60, s61
    s_add_u32 s62, s62, 5120
    v_lshl_add_u32 v%d, v1, 4, s62
    s_add_u32 s77, s60, 3072
    """ % (S_WV, EXT, S_WV, KAD, KAD + 1))
    for i in range(3):
        r.ds("ds_write_b128 v%d, %s offset:%d" % (KAD, vr(KD + 4 * i, 4), 1024 * i), "kw")


def kg_table(r):
    T = KT
    for i in range(3):
        r.ds("ds_read_b128 %s, v%d offset:%d" % (vr(FE + 4 * i, 4), KAD + 1, 1024 * i), "kx")
    r("""
    v_and_b32 v%d, 31, v1
    v_lshrrev_b32 v%d, 5, v1
    v_lshlrev_b32 v%d, 3, v%d
    v_lshl_add_u32 v%d, v%d, 4, v%d
    v_add_u32 v%d, s77, v%d
    v_cmp_gt_u32 vcc, 32, v1
    v_lshlrev_b32 v%d, 3, v%d
    v_add_u32 v%d, 512, v%d
    v_lshlrev_b32 v%d, 2, v%d
    v_add_u32 v%d, 768, v%d
    v_cndmask_b32 v%d, v%d, v%d, vcc
    v_add_u32 v%d, s77, v%d
    v_mov_b32 v%d, 128
    v_cndmask_b32 v%d, v%d, 4, vcc
    v_add_u32 v%d, v%d, v%d
    v_lshlrev_b32 v%d, 8, v%d
    v_lshl_add_u32 v%d, v%d, 1, v%d
    v_add_u32 v%d, s77, v%d
    """ % (T, T + 1, T + 2, T + 1, T + 2, T, T + 2, T + 2, T + 2,
           T + 3, T, T + 3, T + 3, T + 4, T, T + 4, T + 4, T + 3, T + 4, T + 3, T + 3, T + 3,
           T + 4, T + 4, T + 4, T + 4, T + 4, T + 3,
           T + 5, T + 1, T + 5, T, T + 5, T + 5, T + 5))
    r.need("lgkm", "kx")
    for i in range(12):
        r("v_add_f32 v%d, v%d, v%d" % (KD + i, KD + i, FE + i))
    for i in range(4):
        r("v_cvt_pk_bf16_f32 v%d, v%d, v%d" % (FE + i, KD + 2 * i, KD + 2 * i + 1))
    for i in range(4):
        r("v_cvt_pk_bf16_f32 v%d, v%d, v%d" % (FE + 4 + i, KD + 8 + i, KD + 8 + i))
    r.ds("ds_write_b64 v%d, %s" % (T + 2, vr(FE, 2)), "kw")
    r.ds("ds_write_b32 v%d, v%d" % (T + 3, FE + 2), "kw")
    r.ds("ds_write_b32 v%d, v%d" % (T + 4, FE + 3), "kw")
    for i in range(4):
        r.ds("ds_write_b16 v%d, v%d offset:%d" % (T + 5, FE + 4 + i, 1024 + 64 * i), "kw")


XAD, XG, XO, XN, XF, XFA, XNA = 24, (36, 112), (64, 84), 104, 124, 123, 47
TAB = EXT + 3072


def ex_addresses(r):
    T, U = 144, 156
    r("""
    v_lshlrev_b32 v%d, 3, v0
    v_cvt_f32_u32 v%d, v%d
    v_lshlrev_b32 v%d, 4, v0
    """ % (T, T, T, U))
    for i in range(1, 12):
        r("v_add_f32 v%d, 0x%x, v%d" % (T + i, f2u(float(i)), T))
    for i in range(6):
        r("v_cvt_pk_bf16_f32 v%d, v%d, v%d" % (T + 2 * i, T + 2 * i, T + 2 * i + 1))
    r("v_cmp_gt_u32 s[26:27], 16, v0")
    for i in range(11):
        r("v_lshlrev_b32_sdwa v%d, 1, v%d dst_sel:DWORD dst_unused:UNUSED_PAD src0_sel:DWORD src1_sel:WORD_%d" % (XAD + i, T + 2 * (i >> 1), i & 1))
        r("v_add_u32 v%d, %d, v%d" % (T + 1, IDXC + 2 * i, U))
        r("v_cndmask_b32 v%d, v%d, v%d, s[26:27]" % (XAD + i, XAD + i, T + 1))
    r("v_add_u32 v%d, %d, v%d" % (XAD + 11, L_TC + 32, U))


def ex_gather(r):
    for ch in range(2):
        for i in range(11):
            r.ds("ds_read_u16 v%d, v%d offset:%d" % (XG[ch] + i, XAD + i, TAB - IDXC + 8192 * ch), "g%d" % ch)
    r("""
    v_bfe_u32 v2, v1, 3, 1
    v_lshlrev_b32 v3, 13, v2
    v_add_u32 v3, %d, v3
    """ % TAB)
    r.ds("ds_read_b64 %s, v3" % vr(XF + 2, 2), "gf")
    r("""
    v_mul_u32_u24 v2, %d, v2
    v_and_b32 v3, 3, v1
    v_mul_u32_u24 v4, %d, v3
    v_add_u32 v2, v2, v4
    v_bfe_u32 v4, v1, 2, 1
    v_lshl_add_u32 v2, v4, 4, v2
    v_add_u32 v%d, %d, v2
    v_mul_u32_u24 v4, v4, v3
    v_cmp_ne_u32 s[26:27], 0, v4
    v_lshlrev_b32 v3, 4, v3
    v_sub_u32 v5, 64, v3
    v_mov_b32 v%d, 0
    v_mov_b32 v%d, 0
    """ % (TCH, TCOPY, XFA, L_TC, XF, XF + 1))
    for ch in range(2):
        S, D = XG[ch], XO[ch]
        O, D2, O2 = D + 6, D + 9, D + 13
        r.need("lgkm", "g%d" % ch)
        for k in range(4):
            r("v_lshl_or_b32 v%d, v%d, 16, v%d" % (D + k, S + 2 * k + 1, S + 2 * k))
            r("v_lshl_or_b32 v%d, v%d, 16, v%d" % (O + k, S + 2 * k + 2, S + 2 * k + 1))
        for k in range(1, 5):
            r("v_lshl_or_b32 v%d, v%d, 16, v%d" % (D2 + k, S + 2 * k + 1, S + 2 * k))
            r("v_lshl_or_b32 v%d, v%d, 16, v%d" % (O2 + k, S + 2 * k + 2, S + 2 * k + 1))
    r.need("lgkm", "gf")
    r("""
    v_lshlrev_b64 %s, v5, %s
    v_cndmask_b32 v%d, 0, v%d, s[26:27]
    v_cndmask_b32 v%d, 0, v%d, s[26:27]
    """ % (vr(XF + 2, 2), vr(XF + 2, 2), XF + 2, XF + 2, XF + 3, XF + 3))


def ex_write(r):
    for ch in range(2):
        D = XO[ch]
        for phi, src in enumerate((D, D + 6, D + 10, D + 14)):
            r.ds("ds_write_b128 v%d, %s offset:%d" % (XAD + 11, vr(src, 4), ch * TCH + phi * TCOPY), "xw")
    r.ds("ds_write_b128 v%d, %s" % (XFA, vr(XF, 4)), "xw")


def xn_issue(r):
    r("""
    v_lshrrev_b32 v2, 1, v1
    v_and_b32 v3, 1, v1
    v_lshlrev_b32 v4, 13, v2
    v_lshl_add_u32 v4, v3, 4, v4
    s_lshl_b32 s60, s%d, 5
    s_lshl_b32 s61, s%d, 19
    s_add_u32 s60, s60, s61
    s_add_u32 s60, s60, 0x%x
    s_add_u32 s61, s60, 0x40000
    """ % (S_P, S_WV, WS_XNB))
    r.vm("buffer_load_dwordx4 %s, v4, s[%d:%d], s60 offen sc1" % (vr(XN, 4), SWS, SWS + 3), "xn")
    r.vm("buffer_load_dwordx4 %s, v4, s[%d:%d], s61 offen sc1" % (vr(XN + 4, 4), SWS, SWS + 3), "xn")
    r("""
    v_mul_u32_u24 v3, %d, v3
    v_lshl_add_u32 v3, v2, 4, v3
    s_lshl_b32 s60, s%d, 10
    s_add_u32 s60, s60, %d
    v_add_u32 v%d, s60, v3
    """ % (UCH, S_WV, L_UI + 512, XNA))


def xn_clear(r):
    r("""
    v_lshrrev_b32 v2, 7, v0
    v_mul_u32_u24 v2, %d, v2
    v_and_b32 v3, 127, v0
    v_lshl_add_u32 v2, v3, 2, v2
    v_add_u32 v2, %d, v2
    v_mov_b32 v3, 0
    v_lshlrev_b32 v4, 2, v1
    v_min_u32 v4, 60, v4
    v_add_u32 v4, %d, v4
    """ % (UCH, L_UI, L_FLG))
    r.ds("ds_write_b32 v2, v3", "xw")
    r.ds("ds_write_b32 v4, v3", "xw")


def xn_write(r):
    r.need("vm", "xn")
    r.ds("ds_write_b128 v%d, %s" % (XNA, vr(XN, 4)), "xw")
    r.ds("ds_write_b128 v%d, %s offset:512" % (XNA, vr(XN + 4, 4)), "xw")


CV = 32
CRA, CRB = 128, 129


def conv_addresses(r):
    r("""
    v_and_b32 v2, 15, v1
    v_lshrrev_b32 v3, 4, v1
    v_add_u32 v4, 1, v2
    v_and_b32 v5, 3, v4
    v_mul_u32_u24 v5, %d, v5
    v_lshrrev_b32 v4, 2, v4
    v_lshl_add_u32 v5, v4, 3, v5
    v_lshl_add_u32 v5, v3, 4, v5
    s_lshr_b32 s60, s%d, 1
    s_and_b32 s61, s%d, 1
    s_lshl_b32 s61, s61, 8
    s_mul_i32 s62, s60, %d
    s_add_u32 s62, s62, s61
    s_add_u32 s62, s62, %d
    v_add_u32 v%d, s62, v5
    v_lshlrev_b32 v4, 5, v2
    v_lshlrev_b32 v5, 4, v3
    v_sub_u32 v4, v4, v5
    s_mul_i32 s62, s60, %d
    s_sub_u32 s62, s62, s61
    s_add_u32 s62, s62, %d
    v_add_u32 v%d, s62, v4
    v_lshl_add_u32 v%d, v2, 6, v5
    """ % (TCOPY, S_WV, S_WV, TCH, L_TC, CRA, UCH, L_UI + 16 * 33 - 192, CRB, CRB + 1))


def conv_main(a, sb, fill):
    A, FA, FB = CV, CV + 32, CV + 64

    def ra(mu, nu):
        for e in range(2):
            sb.ds("ds_read_b64 %s, v%d offset:%d" % (vr(FA + 4 * nu + 2 * e, 2), CRA, 64 * mu + 512 * nu + 8 * e), ("a", mu, nu))

    def rb(mu, de):
        sb.ds("ds_read_b128 %s, v%d offset:%d" % (vr(FB + 4 * de, 4), CRB, 512 * de + 64 * (3 - mu)), ("b", mu, de))
    ra(0, 0)
    for de in range(7, -1, -1):
        rb(0, de)
    for nu in range(1, 8):
        ra(0, nu)
    n = 0
    for mu in range(4):
        for nu in range(8):
            for j in range(7, nu - 1, -1):
                sb.need("lgkm", [("a", mu, nu), ("b", mu, j - nu)])
                c = A + 4 * j
                a("v_mfma_f32_16x16x32_bf16 %s, %s, %s, %s" % (vr(c, 4), vr(FA + 4 * nu, 4), vr(FB + 4 * (j - nu), 4),
                                                              "0" if mu == 0 and nu == 0 else vr(c, 4)))
                if mu < 3 and j == 7 and nu > 0:
                    ra(mu + 1, nu - 1)
                if mu < 3 and j == 7:
                    rb(mu + 1, 7 - nu)
                n += 1
                if fill and n % 6 == 3:
                    sb.vm(fill.pop(0), "wd")
            if mu < 3 and nu == 7:
                ra(mu + 1, 7)
    assert not fill


def conv_out(a, sb):
    A, T = CV, CV + 32
    a("s_lshl_b32 s60, s%d, 13\ns_add_u32 m0, s60, %d" % (S_WV, L_CRED))
    for r in range(32):
        sb.ds("ds_write_addtid_b32 v%d offset:%d" % (A + r, 256 * r), "w")
    a("""
    s_lshl_b32 s60, s%d, 2
    s_add_u32 s60, s60, %d
    v_mov_b32 v20, s60
    v_mov_b32 v21, %d
    v_mov_b32 v22, -1
    v_mov_b32 v23, s%d
    s_lshl_b32 s60, s%d, 13
    s_lshl_b32 s61, s%d, 11
    s_add_u32 s60, s60, s61
    s_add_u32 s63, s60, 0x%x
    s_lshl_b32 s60, s%d, 8
    s_add_u32 s60, s60, s%d
    s_lshl_b32 s60, s60, 5
    s_add_u32 s77, s60, 0x%x
    """ % (S_WV, L_FLG, L_FLG, S_TAG, S_P, S_WV, WS_Y, S_WV, S_P, WS_YF))
    sb.drain("lgkm")
    a("ds_write_b32 v20, v22")
    a("s_add_u32 m0, s61, %d" % L_CRED)
    lds_wait(a, "L_cw", 21, T, (0,))
    for t in range(2):
        for w in range(4):
            for r in range(4):
                sb.ds("ds_read_addtid_b32 v%d offset:%d" % (T + 16 * t + 4 * w + r, 8192 * w + 1024 * t + 256 * r), "r%d" % t)
    for t in range(2):
        sb.need("lgkm", "r%d" % t)
        b = T + 16 * t
        for c in range(2):
            for r in range(4):
                a("v_add_f32 v%d, v%d, v%d" % (b + 8 * c + r, b + 8 * c + r, b + 8 * c + 4 + r))
        for r in range(4):
            a("v_cvt_pk_bf16_f32 v%d, v%d, v%d" % (A + 4 * t + r, b + r, b + 8 + r))
        sb.vm("buffer_store_dwordx4 %s, v%d, s[%d:%d], s63 offen offset:%d sc1" % (vr(A + 4 * t, 4), CRB + 1, SWS, SWS + 3, 1024 * t), "st")


def h_waves(a):
    sb = Sb(a)
    roles(a)
    h_offsets(a)
    a("s_waitcnt lgkmcnt(0)")
    descriptors(a)
    a("""
    s_cmp_lt_u32 s%d, 2
    s_cselect_b32 s%d, s%d, s%d
    s_cselect_b32 s%d, s%d, s%d
    s_and_b32 s%d, s62, 0x%x
    s_mov_b32 s%d, 0x20000
    s_and_b32 s%d, s62, s%d
    """ % (S_WV, SW, P_WG, P_WU, SW + 1, P_WG + 1, P_WU + 1, SW + 2, 512 * 1792 * 2, SW + 3, SX + 2, SX + 2))
    stamp_init(a)
    kg_issue(a, sb)
    play(a, sb, dma(0))
    stamp(a)

    def barrier(*need, pf=None):
        sb.drain("lgkm")
        if OPT["stamps"] == 2:
            stamp(a)
        if pf:
            pf_chunk(a, pf)
        sb.need("vm", list(need))
        if OPT["stamps"] == 2 or not pf:
            stamp(a)
        a("s_barrier")
        if OPT["stamps"] == 2 or not pf:
            stamp(a)

    def piece(*fns):
        r = Rec()
        for f in fns:
            f(r)
        return r.items
    D = {n: dma(n) for n in range(1, 8)}
    play(a, sb, piece(kg_addresses))
    make_tag(a)
    stamp(a)
    n1 = OPT["s1pre"]
    play(a, sb, weave(piece(kg_front, kg_pack_rows), D[1][:n1], lead=60))
    stamp(a)
    a("s_barrier")
    barrier(("S", 0))
    planes = [lambda r, x=x: kg_transpose(r, *x) for x in ((PKE, 4, FE), (PKE + 16, 4, FE + 16), (PKG, 3, FG), (PKG + 12, 3, FG + 16))]
    play(a, sb, D[1][n1:] + weave(piece(*planes[:2]), D[2]))
    barrier(("S", 1))
    play(a, sb, weave(piece(*planes[2:]), D[3]))
    barrier(("S", 2))

    def ln_flag(r):
        ln_block(r)
        r("s_lshl_b32 s60, s%d, 4\ns_add_u32 s63, s60, 0x%x\nv_mov_b32 v2, s%d\ns_cmp_eq_u32 s%d, 0" % (S_LN, WS_LNF, S_TAG, S_WV))
        with r.group():
            r("s_cselect_b64 exec, 1, 0")
            r.vm("buffer_store_dword v2, off, s[%d:%d], s63 sc1" % (SWS, SWS + 3), "flag")
            r("s_mov_b64 exec, -1")
    play(a, sb, piece(ln_flag) + weave(piece(kg_product, kg_exchange, ex_addresses), D[4]))
    barrier(("S", 3))
    play(a, sb, weave(piece(kg_table, conv_addresses), D[5]))
    barrier(("S", 4))
    a("""
    v_lshlrev_b32 v20, 4, v0
    v_add_u32 v20, 0x%x, v20
    v_min_u32 v21, 27, v1
    s_mul_i32 s60, s%d, 28
    v_add_u32 v21, s60, v21
    v_lshlrev_b32 v21, 6, v21
    v_add_u32 v21, 0x%x, v21
    """ % (WS_LNF, S_WV, WS_WF))
    polls = ["buffer_load_dword v%d, v%d, s[%d:%d], 0 offen sc1" % (22 + i, 20 + i, SWS, SWS + 3) for i in range(2)]
    play(a, sb, weave(piece(ex_gather), D[6][:7] + [[("vm", x, "poll")] for x in polls] + D[6][7:]))
    sb.need("vm", ["poll", ("S", 5)])
    spin(a, "L_hp", polls, [22, 23])
    barrier()
    wl = [[("vm", x, "wd")] for x in wd_loads()]

    def epoch(r):
        r("s_or_b32 s60, s2, s%d\nv_mov_b32 v2, s%d\ns_cmp_eq_u32 s60, 0" % (S_WV, S_TAG))
        with r.group():
            r("s_cselect_b64 exec, 1, 0")
            r.vm("buffer_store_dword v2, off, s[%d:%d], 0 sc1" % (SWS, SWS + 3), "flag")
            r("s_mov_b64 exec, -1")
    w5, w6, w7 = OPT["w5"], OPT["w6"], OPT["w7"]
    play(a, sb, weave(piece(g2_setup, epoch), D[7]) + piece(xn_issue) + wl[:w5])
    barrier(("S", 6))
    play(a, sb, weave(piece(xn_clear, ex_write), wl[w5:w6]))
    barrier(("S", 7))
    play(a, sb, piece(xn_write) + wl[w6:w7])
    barrier()
    h_flag_addr(a, 27, 6)
    play(a, sb, wl[w7:])
    barrier()
    conv_main(a, sb, [])
    stamp(a)
    conv_out(a, sb)
    stamp(a)
    poll = "buffer_load_dword v2, v27, s[%d:%d], 0 offen sc1" % (SWS, SWS + 3)
    sb.vm(poll, "poll")
    sb.drain("vm")
    r = Rec(); post(r, 23, 77); play(a, sb, r.items)
    spin(a, "L_hh", [poll], [2])
    stamp(a)
    r = Rec()
    r("s_mul_i32 s60, s%d, %d\ns_add_u32 s60, s60, %d\nv_lshl_add_u32 v3, v1, 2, s60" % (S_WV, RWAVE, L_H0))
    for i in range(32):
        r.ds("ds_write_b32 v3, v%d offset:%d" % (ACC2 + i, RPITCH * i), "put")
    hooks = spread(a, sb, r.items, 15, 20)

    def h0_done():
        sb.drain("lgkm")
        a("ds_write_b32 v20, v22 offset:16")
    hooks[22] = h0_done
    hooks[25] = lambda: lds_wait(a, "L_hw", 21, 64, (1,))
    g2_stream(a, sb, lambda i: 8, 8, hooks)
    stamp(a)
    r = Rec(); put_tid(r, 1, L_H1); play(a, sb, r.items)
    sb.drain("lgkm")
    stamp(a)
    a("s_barrier")
    stamp_flush(a)


DESC = """.amdhsa_kernel %s
  .amdhsa_next_free_vgpr 256
  .amdhsa_next_free_sgpr 102
  .amdhsa_accum_offset 256
  .amdhsa_group_segment_fixed_size 0
  .amdhsa_kernarg_size 128
  .amdhsa_user_sgpr_count 2
  .amdhsa_user_sgpr_kernarg_segment_ptr 1
  .amdhsa_system_sgpr_workgroup_id_x 1
.end_amdhsa_kernel
"""


def kernel():
    a = Asm()
    a("""
    s_cmp_ge_u32 s2, 256
    s_cbranch_scc1 L_end
    s_load_dwordx16 s[8:23], s[0:1], 0
    s_load_dwordx16 s[24:39], s[0:1], 64
    v_lshrrev_b32 v2, 6, v0
    v_and_b32 v1, 63, v0
    v_readfirstlane_b32 s%d, v2
    v_and_b32 v0, 255, v0
    s_and_b32 s%d, s2, 7
    s_lshr_b32 s%d, s2, 3
    s_and_b32 s%d, s%d, 3
    s_cmp_lt_u32 s%d, 4
    s_cbranch_scc1 L_G
    """ % (S_W8, S_XCD, S_LOC, S_WV, S_W8, S_W8))
    h_waves(a)
    a("L_end:\ns_endpgm")
    g_waves(a)
    return a


def build():
    ref = open("cdna_kernels/%s.s.ref" % NAME).read().split("\n")
    head = [l for l in ref if l.startswith(";") and "@launch" not in l and "Override" not in l and "grid=ceil" not in l][:17]
    n = NAME + "_kernel"
    out = head + ["; @launch grid=(256,1,1) block=(512,1,1) lds=163840"]
    out += ['.amdgcn_target "amdgcn-amd-amdhsa--gfx950"', ".text", ".globl %s" % n, ".p2align 8", ".type %s,@function" % n, "%s:" % n]
    out += [kernel().finish(True), '.section .rodata,"a"', ".p2align 6", DESC % n]
    return "\n".join(out)


if __name__ == "__main__":
    for x in sys.argv[2:]:
        k, _, v = x.partition("=")
        OPT[k] = (int(v) if v.isdigit() else v) if v else True
    open(sys.argv[1], "w").write(build())
```
